```python
import torch

def _softmax(x, axis=-1):
    return torch.softmax(x, dim=axis)
def _gelu(x):
    return torch.nn.functional.gelu(x, approximate="tanh")
def _silu(x):
    return torch.nn.functional.silu(x)
def _sigmoid(x):
    return torch.sigmoid(x)
def _layernorm(x, axis=-1, eps=1e-5):
    m = x.mean(dim=axis, keepdim=True)
    v = x.var(dim=axis, keepdim=True, unbiased=False)
    return (x - m) / torch.sqrt(v + eps)
def _scatter_add(tgt, idx, src, axis=0):
    return tgt.clone().index_add_(axis, idx, src)
def _segment_sum(src, seg, n):
    out = torch.zeros((n,) + src.shape[1:], dtype=src.dtype)
    return out.index_add_(0, seg, src)
def _pad(x, pw):
    flat = tuple(v for pair in reversed(pw) for v in pair)
    return torch.nn.functional.pad(x, flat)

kernel_name = 'standalone__softmax_full_mha__prompt'

def setup_inputs():

    _w = (lambda a: (lambda t: t.to(torch.bfloat16) if t.is_floating_point() else t)(torch.as_tensor(a)))
    B, S, D = 1, 2048, 1024
    return {
        "x": _w((lambda *s: torch.randn(*s, dtype=torch.bfloat16) * 0.2)(B, S, D)),
        "wqkv": _w((lambda *s: torch.randn(*s, dtype=torch.bfloat16) * 0.2)(D, 3 * D)),
        "wo": _w((lambda *s: torch.randn(*s, dtype=torch.bfloat16) * 0.05)(D, D)),
    }

def reference(x, wqkv, wo):
    B, S, D = x.shape
    H = 32; Dh = D // H
    qkv = (lambda x, *d: x.permute(*d))((x @ wqkv).reshape(B, S, 3, H, Dh), 2, 0, 3, 1, 4)
    q, k, v = qkv[0], qkv[1], qkv[2]
    scale = Dh ** -0.5
    scores = torch.einsum("bhqd,bhkd->bhqk", q, k) * scale
    p = _softmax(scores, axis=-1)
    o = torch.einsum("bhqk,bhkd->bhqd", p, v)
    return (lambda x, *d: x.permute(*d))(o, 0, 2, 1, 3).reshape(B, S, D) @ wo
```

```python
import gen
from gen import *

K2_SLOT = 32768
K2_NBUF = 4
T_BOUND2 = 48.0 * 48.0
V_HI = 2.0 ** 100
V_LO = 2.0 ** -100

def E(s, i): return f"v_exp_f32 v{s+i}, v{s+i}"
def C(p, s, i): return f"v_cvt_pk_bf16_f32 v{p+i}, v{s+2*i}, v{s+2*i+1}"

def gen_k2(name):
    a = A(); kernel_header(a, name)
    S_RB, S_HP, S_WAVE, S_KH, S_HH, S_RP, S_H = 16, 17, 18, 19, 12, 13, 14
    SWS = 20
    S_T0, S_T1, S_I, S_SLOT, S_GOFF, S_LW, S_BLK, S_KVH = 36, 37, 35, 34, 38, 39, 40, 41
    Q = lambda g, f: 8 + g * 8 + f * 4
    K, V = 24, 32
    S = [40, 56]; P = [72, 80]; O = [88, 104]; L = [120, 124]; ONES, IDX = 128, 132
    VA = 133
    NEGM = [136, 152]
    a("s_cmp_ge_u32 s2, 256")
    a(f"s_cbranch_scc1 {name}_end")
    a("s_load_dwordx2 s[8:9], s[0:1], 40")
    decode_wg(a, S_RB, S_HP, S_T0, S_T1)
    a("v_lshrrev_b32 v1, 6, v0")
    a("v_and_b32 v0, 63, v0")
    a("s_nop 0")
    a(f"v_readfirstlane_b32 s{S_WAVE}, v1")
    a("v_lshlrev_b32 v1, 4, v0")
    a("s_nop 2")
    a(f"s_lshr_b32 s{S_KH}, s{S_WAVE}, 2")
    a(f"s_bfe_u32 s{S_HH}, s{S_WAVE}, 0x10001")
    a(f"s_and_b32 s{S_RP}, s{S_WAVE}, 1")
    a(f"s_lshl_b32 s{S_H}, s{S_HP}, 1")
    a(f"s_add_u32 s{S_H}, s{S_H}, s{S_HH}")
    a("s_waitcnt lgkmcnt(0)")
    srd(a, SWS, 8, 9, WS_END)
    stamp(a, 0)
    a(f"s_lshr_b32 s{S_T0}, s{S_WAVE}, 2")
    a(f"s_lshl_b32 s{S_T1}, s{S_HP}, 1")
    a(f"s_add_u32 s{S_T0}, s{S_T0}, s{S_T1}")
    a(f"s_lshl_b32 s{S_T0}, s{S_T0}, 18")
    a(f"s_and_b32 s{S_T1}, s{S_WAVE}, 3")
    a(f"s_lshl_b32 s{S_T1}, s{S_T1}, 12")
    a(f"s_add_u32 s{S_KVH}, s{S_T0}, s{S_T1}")
    a(f"s_add_u32 s{S_KVH}, s{S_KVH}, {WS_KV}")
    a(f"s_lshl_b32 s{S_LW}, s{S_WAVE}, 12")
    a(f"s_mov_b32 s{S_BLK}, s{S_RB}")
    a(f"s_mov_b32 s{S_SLOT}, 0")
    def dma():
        a(f"s_lshl_b32 s{S_T0}, s{S_BLK}, 14")
        a(f"s_add_u32 s{S_GOFF}, s{S_KVH}, s{S_T0}")
        a(f"s_add_u32 m0, s{S_SLOT}, s{S_LW}")
        a(f"s_add_u32 s{S_BLK}, s{S_BLK}, 1")
        for i in range(4):
            a(f"buffer_load_dwordx4 v1, {sr(SWS,4)}, s{S_GOFF} offen offset:{i*1024} lds")
        a(f"s_and_b32 s{S_BLK}, s{S_BLK}, 15")
        a(f"s_add_u32 s{S_SLOT}, s{S_SLOT}, {K2_SLOT}")
        a(f"s_and_b32 s{S_SLOT}, s{S_SLOT}, {K2_NBUF*K2_SLOT-1}")
    for i in range(3): dma()
    a(f"s_lshl_b32 s{S_T0}, s{S_H}, 6")
    a(f"s_lshl_b32 s{S_T1}, s{S_RB}, 2")
    a(f"s_add_u32 s{S_T0}, s{S_T0}, s{S_T1}")
    a(f"s_lshl_b32 s{S_T1}, s{S_RP}, 1")
    a(f"s_add_u32 s{S_T0}, s{S_T0}, s{S_T1}")
    a(f"s_lshl_b32 s{S_T0}, s{S_T0}, 11")
    if WS_Q: a(f"s_add_u32 s{S_T0}, s{S_T0}, {WS_Q}")
    for g in range(2):
        for f in range(2):
            a(f"buffer_load_dwordx4 {vr(Q(g,f),4)}, v1, {sr(SWS,4)}, s{S_T0} offen offset:{g*2048+f*1024}")
    NR = 40
    a(f"s_lshl_b32 s{S_T0}, s{S_HP}, 10")
    a(f"s_add_u32 s{S_T0}, s{S_T0}, {WS_NRM}")
    a(f"buffer_load_dwordx4 {vr(NR,4)}, v1, {sr(SWS,4)}, s{S_T0} offen")
    for r in list(range(P[0], P[0] + 16)) + list(range(O[0], O[0] + 40)) + list(range(V, V + 8)):
        a(f"v_mov_b32 v{r}, 0")
    a("v_and_b32 v2, 3, v0")
    a("v_cmp_gt_u32 vcc, 2, v2")
    a("v_bfe_u32 v3, v0, 2, 1")
    a("v_cmp_eq_u32 s[30:31], 0, v3")
    a("s_nop 1")
    a("s_and_b64 s[32:33], vcc, s[30:31]")
    a("s_andn2_b64 s[30:31], vcc, s[30:31]")
    a("v_mov_b32 v4, 0x3f803f80")
    a(f"v_cndmask_b32 v{ONES}, 0, v4, s[32:33]")
    a(f"v_cndmask_b32 v{ONES+1}, 0, v4, s[32:33]")
    a(f"v_cndmask_b32 v{ONES+2}, 0, v4, s[30:31]")
    a(f"v_cndmask_b32 v{ONES+3}, 0, v4, s[30:31]")
    a(f"v_mov_b32 v{IDX}, 0x4444")
    a("v_mov_b32 v4, 0xeeee")
    a("v_cmp_eq_u32 vcc, 1, v2")
    a("s_nop 1")
    a(f"v_cndmask_b32 v{IDX}, v{IDX}, v4, vcc")
    a(f"s_lshl_b32 s{S_T0}, s{S_HH}, 14")
    a(f"s_lshl_b32 s{S_T1}, s{S_KH}, 13")
    a(f"s_add_u32 s{S_T0}, s{S_T0}, s{S_T1}")
    a(f"v_add_u32 v{VA}, s{S_T0}, v1")
    a("s_waitcnt vmcnt(0)")
    a("v_bfe_u32 v2, v0, 1, 4")
    a(f"v_cmp_eq_u32 vcc, s{S_RB}, v2")
    a("s_nop 1")
    a(f"v_cndmask_b32 v{NR}, 0, v{NR}, vcc")
    for ctl in ("row_shr:1", "row_shr:2", "row_shr:4", "row_shr:8"):
        a("s_nop 1")
        for s in range(3):
            a(f"v_max_f32_dpp v{NR+s}, v{NR+s}, v{NR+s} {ctl} row_mask:0xf bank_mask:0xf bound_ctrl:0")
    a("s_nop 1")
    for s in range(3):
        a(f"v_max_f32_dpp v{NR+s}, v{NR+s}, v{NR+s} row_bcast:15 row_mask:0xa bank_mask:0xf")
    a("s_nop 1")
    a(f"v_mul_f32 v{NR}, v{NR}, v{NR+1}")
    a(f"v_mov_b32 v2, {f2u(T_BOUND2)}")
    a(f"v_cmp_le_f32 vcc, v{NR}, v2")
    a(f"v_mov_b32 v2, {f2u(V_HI)}")
    a(f"v_cmp_le_f32 s[30:31], v{NR+2}, v2")
    a(f"v_mov_b32 v2, {f2u(V_LO)}")
    a(f"v_cmp_ge_f32 s[32:33], v{NR+2}, v2")
    a("s_nop 1")
    a("s_and_b64 s[30:31], s[30:31], vcc")
    a("s_and_b64 s[30:31], s[30:31], s[32:33]")
    a("s_bitcmp1_b32 s30, 31")
    a("s_cselect_b32 s42, 1, 0")
    a("s_bitcmp1_b32 s31, 31")
    a("s_cselect_b32 s43, 1, 0")
    a("s_and_b32 s42, s42, s43")
    a("s_barrier")
    stamp(a, 1)

    def steps(cslot):
        for n in range(4):
            g = n % 2; T = n // 2; cur = n % 2; nxt = 1 - cur; gn = (n + 1) % 2; gp = (n - 1) % 2
            s = S[cur]; sn = S[nxt]; p = P[cur]; pp = P[nxt]
            cN = None if cslot is None else NEGM[gn]
            a(f"s_setprio {[1,0,3,2][n]}")
            if n == 1: a("s_waitcnt lgkmcnt(1)")
            if n == 3: a("s_waitcnt lgkmcnt(1)")
            a(mf32(sn, K, Q(gn, 0), cN))
            a(E(s, 0)); a(E(s, 1)); a(E(s, 2))
            a(mf32(sn, K + 4, Q(gn, 1), sn))
            if n == 0:
                a(f"ds_read_b128 {vr(K,4)}, v{VA} offset:4096")
                a(f"ds_read_b128 {vr(K+4,4)}, v{VA} offset:{4096+1024}")
            if n == 2:
                a(f"s_cmp_ge_u32 s{S_I}, 14")
                a(f"s_cbranch_scc1 {lbl}_w0")
                a("s_waitcnt vmcnt(4)")
                a(f"s_branch {lbl}_w1")
                a(f"{lbl}_w0:")
                a("s_waitcnt vmcnt(0)")
                a(f"{lbl}_w1:")
                a("s_barrier")
                a(f"s_cmp_ge_u32 s{S_I}, 13")
                a(f"s_cbranch_scc1 {lbl}_nodma")
                dma()
                a(f"{lbl}_nodma:")
                a(f"v_mov_b32 v134, v{VA}")
                a(f"v_add_u32 v{VA}, {K2_SLOT}, v{VA}")
                a(f"v_and_b32 v{VA}, {K2_NBUF*K2_SLOT-1}, v{VA}")
                a(f"ds_read_b128 {vr(K,4)}, v{VA}")
                a(f"ds_read_b128 {vr(K+4,4)}, v{VA} offset:1024")
            a(E(s, 3)); a(E(s, 4)); a(E(s, 5))
            if n == 1: a("s_waitcnt lgkmcnt(0)")
            if n == 3: a("s_waitcnt lgkmcnt(0)")
            a(mf32(O[gp], V + 4, pp + 4, O[gp]))
            if n == 0: a(f"ds_read_b128 {vr(V+4,4)}, v{VA} offset:3072")
            if n == 2: a(f"ds_read_b128 {vr(V+4,4)}, v134 offset:{4096+3072}")
            a(E(s, 6)); a(E(s, 7))
            a(f"v_smfmac_f32_16x16x64_bf16 {vr(L[gp],4)}, {vr(ONES,4)}, {vr(pp,8)}, v{IDX}")
            for i in range(4): a(C(p, s, i))
            a(E(s, 8)); a(E(s, 9))
            if n == 0: a("s_waitcnt lgkmcnt(3)")
            if n == 2: a("s_waitcnt lgkmcnt(3)")
            a(mf32(O[g], V, p, O[g]))
            if n == 1: a(f"ds_read_b128 {vr(V,4)}, v{VA} offset:{4096+2048}")
            if n == 3: a(f"ds_read_b128 {vr(V,4)}, v{VA} offset:2048")
            for i in range(10, 16): a(E(s, i))
            for i in range(4, 8): a(C(p, s, i))

    def mainloop(tag, cslot):
        nonlocal lbl
        lbl = f"{name}_{tag}"
        a(f"ds_read_b128 {vr(K,4)}, v{VA}")
        a(f"ds_read_b128 {vr(K+4,4)}, v{VA} offset:1024")
        a(f"ds_read_b128 {vr(V,4)}, v{VA} offset:2048")
        a("s_waitcnt lgkmcnt(1)")
        c0 = None if cslot is None else NEGM[0]
        a(mf32(S[0], K, Q(0, 0), c0))
        a(mf32(S[0], K + 4, Q(0, 1), S[0]))
        a(f"s_mov_b32 s{S_I}, 0")
        a("s_nop 15")
        a(f"{lbl}_loop:")
        steps(cslot)
        a(f"s_add_u32 s{S_I}, s{S_I}, 1")
        a(f"s_cmp_lt_u32 s{S_I}, 16")
        a(f"s_cbranch_scc1 {lbl}_loop")
        a("s_nop 1")
        a(mf32(O[1], V + 4, P[1] + 4, O[1]))
        a(f"v_smfmac_f32_16x16x64_bf16 {vr(L[1],4)}, {vr(ONES,4)}, {vr(P[1],8)}, v{IDX}")
    lbl = None
    a("s_cmp_eq_u32 s42, 0")
    a(f"s_cbranch_scc1 {name}_slow")
    mainloop("fast", None)
    a(f"{name}_fin:")
    stamp(a, 2)
    a("s_setprio 0")
    a("s_waitcnt lgkmcnt(0)")
    a("s_nop 15")
    for g in range(2):
        a(f"v_add_f32 v{L[g]}, v{L[g]}, v{L[g]+1}")
    a(f"s_mul_i32 s{S_T0}, s{S_WAVE}, 4608")
    a(f"v_add_u32 v2, s{S_T0}, v1")
    a(f"v_lshrrev_b32 v3, 2, v1")
    a(f"v_add_u32 v3, s{S_T0}, v3")
    a(f"s_xor_b32 s{S_T1}, s{S_WAVE}, 4")
    a(f"s_mul_i32 s{S_T1}, s{S_T1}, 4608")
    a(f"v_add_u32 v4, s{S_T1}, v1")
    a(f"v_lshrrev_b32 v5, 2, v1")
    a(f"v_add_u32 v5, s{S_T1}, v5")
    a(f"s_cmp_eq_u32 s{S_KH}, 0")
    a(f"s_cbranch_scc1 {name}_x0")
    def xchg(keep, send):
        for i in range(4):
            a(f"ds_write_b128 v2, {vr(O[send]+4*i,4)} offset:{i*1024}")
        a(f"ds_write_b32 v3, v{L[send]} offset:4096")
        a("s_waitcnt lgkmcnt(0)")
        a("s_barrier")
        for i in range(4):
            a(f"ds_read_b128 {vr(S[0]+4*i,4)}, v4 offset:{i*1024}")
        a(f"ds_read_b32 v{S[1]}, v5 offset:4096")
        a("s_waitcnt lgkmcnt(0)")
        a(f"v_add_f32 v{S[1]}, v{S[1]}, v{L[keep]}")
        a(f"v_rcp_f32 v{S[1]}, v{S[1]}")
        for i in range(16):
            a(f"v_add_f32 v{S[0]+i}, v{S[0]+i}, v{O[keep]+i}")
        for i in range(16):
            a(f"v_mul_f32 v{S[0]+i}, v{S[0]+i}, v{S[1]}")
    xchg(1, 0)
    a(f"s_branch {name}_x1")
    a(f"{name}_x0:")
    xchg(0, 1)
    a(f"{name}_x1:")
    for i in range(8):
        a(C(P[0], S[0], i))
    a(f"s_lshl_b32 s{S_T0}, s{S_RB}, 2")
    a(f"s_lshl_b32 s{S_T1}, s{S_RP}, 1")
    a(f"s_add_u32 s{S_T0}, s{S_T0}, s{S_T1}")
    a(f"s_add_u32 s{S_T0}, s{S_T0}, s{S_KH}")
    a(f"s_lshl_b32 s{S_T0}, s{S_T0}, 6")
    a(f"s_add_u32 s{S_T0}, s{S_T0}, s{S_H}")
    a(f"s_lshl_b32 s{S_T0}, s{S_T0}, 10")
    a(f"s_add_u32 s{S_T0}, s{S_T0}, {WS_O}")
    a("v_bfe_u32 v2, v0, 4, 1")
    a("v_lshlrev_b32 v2, 15, v2")
    a("v_lshrrev_b32 v3, 5, v0")
    a("v_lshl_add_u32 v2, v3, 8, v2")
    a("v_and_b32 v3, 15, v0")
    a("v_lshl_add_u32 v2, v3, 4, v2")
    for f in range(2):
        a(f"buffer_store_dwordx4 {vr(P[0]+4*f,4)}, v2, {sr(SWS,4)}, s{S_T0} offen offset:{f*512}")
    if gen.STAMP:
        a("s_waitcnt vmcnt(0)")
        stamp(a, 3)
        a(f"s_lshl_b32 s91, s2, 3")
        a(f"s_add_u32 s91, s91, s{S_WAVE}")
        stamp_flush(a, 4, 8, 9, 91)
    a("s_endpgm")

    a(f"{name}_slow:")
    M = [168, 169]
    for g in range(2): a(f"v_mov_b32 v{M[g]}, 0xff800000")
    a(f"s_mov_b32 s{S_I}, 0")
    a(f"v_mov_b32 v134, v{VA}")
    a(f"{name}_pre_loop:")
    for T in range(2):
        a(f"ds_read_b128 {vr(K,4)}, v134 offset:{T*4096}")
        a(f"ds_read_b128 {vr(K+4,4)}, v134 offset:{T*4096+1024}")
        a("s_waitcnt lgkmcnt(0)")
        for g in range(2):
            a(mf32(S[g], K, Q(g, 0), None))
            a(mf32(S[g], K + 4, Q(g, 1), S[g]))
        a("s_nop 15")
        a("s_nop 3")
        for g in range(2):
            for i in range(0, 16, 2):
                a(f"v_max3_f32 v{M[g]}, v{S[g]+i}, v{S[g]+i+1}, v{M[g]}")
    a("s_waitcnt vmcnt(4)")
    a("s_barrier")
    dma()
    a(f"v_add_u32 v134, {K2_SLOT}, v134")
    a(f"v_and_b32 v134, {K2_NBUF*K2_SLOT-1}, v134")
    a(f"s_add_u32 s{S_I}, s{S_I}, 1")
    a(f"s_cmp_lt_u32 s{S_I}, 16")
    a(f"s_cbranch_scc1 {name}_pre_loop")
    a("s_waitcnt vmcnt(0)")
    for g in range(2):
        a(f"v_mov_b32 v2, v{M[g]}")
        a("s_nop 1")
        a(f"v_permlane32_swap_b32 v{M[g]}, v2")
        a("s_nop 1")
        a(f"v_max_f32 v{M[g]}, v{M[g]}, v2")
    a(f"s_lshl_b32 s{S_T0}, s{S_WAVE}, 9")
    a(f"s_add_u32 s{S_T0}, s{S_T0}, {3*K2_SLOT}")
    a("v_lshrrev_b32 v3, 2, v1")
    a(f"v_add_u32 v2, s{S_T0}, v3")
    a(f"s_xor_b32 s{S_T1}, s{S_T0}, {4<<9}")
    a(f"v_add_u32 v3, s{S_T1}, v3")
    a("s_barrier")
    a(f"ds_write_b32 v2, v{M[0]}")
    a(f"ds_write_b32 v2, v{M[1]} offset:256")
    a("s_waitcnt lgkmcnt(0)")
    a("s_barrier")
    a(f"ds_read_b32 v4, v3")
    a(f"ds_read_b32 v5, v3 offset:256")
    a("s_waitcnt lgkmcnt(0)")
    a(f"v_max_f32 v4, v4, v{M[0]}")
    a(f"v_max_f32 v5, v5, v{M[1]}")
    for i in range(16):
        a(f"v_sub_f32 v{NEGM[0]+i}, 0, v4")
        a(f"v_sub_f32 v{NEGM[1]+i}, 0, v5")
    a("s_barrier")
    mainloop("slow", 1)
    a(f"s_branch {name}_fin")
    a(f"{name}_end:")
    a("s_endpgm")
    return a.text(), kernel_desc(name, 176, 96 if gen.STAMP else 64)

def gen_k3(name):
    a = A(); kernel_header(a, name)
    S_RB, S_CB, S_WAVE, S_RG, S_KH = 16, 17, 18, 19, 12
    SWO, SWS, SOUT = 20, 24, 28
    S_T0, S_T1, S_I, S_OB = 36, 37, 35, 38
    a("s_cmp_ge_u32 s2, 256")
    a(f"s_cbranch_scc1 {name}_end")
    a("s_load_dwordx4 s[4:7], s[0:1], 16")
    a("s_load_dwordx2 s[8:9], s[0:1], 40")
    a(f"s_and_b32 s{S_T0}, s2, 7")
    a(f"s_lshr_b32 s{S_T1}, s2, 3")
    a(f"s_lshr_b32 s{S_RB}, s{S_T0}, 1")
    a(f"s_lshl_b32 s{S_RB}, s{S_RB}, 2")
    a(f"s_and_b32 s{S_CB}, s{S_T1}, 3")
    a(f"s_add_u32 s{S_RB}, s{S_RB}, s{S_CB}")
    a(f"s_and_b32 s{S_CB}, s{S_T0}, 1")
    a(f"s_lshl_b32 s{S_CB}, s{S_CB}, 3")
    a(f"s_lshr_b32 s{S_T1}, s{S_T1}, 2")
    a(f"s_add_u32 s{S_CB}, s{S_CB}, s{S_T1}")
    a("v_mov_b32 v6, v0")
    a("v_lshrrev_b32 v1, 6, v0")
    a("v_and_b32 v0, 63, v0")
    a("s_nop 0")
    a(f"v_readfirstlane_b32 s{S_WAVE}, v1")
    a("v_lshlrev_b32 v1, 4, v0")
    a("s_nop 2")
    a(f"s_and_b32 s{S_RG}, s{S_WAVE}, 3")
    a(f"s_lshr_b32 s{S_KH}, s{S_WAVE}, 2")
    a("s_waitcnt lgkmcnt(0)")
    stamp(a, 0)
    a(f"s_lshl_b32 s{S_T0}, s{S_CB}, 7")
    a(f"s_add_u32 s4, s4, s{S_T0}")
    a("s_addc_u32 s5, s5, 0")
    srd(a, SWO, 4, 5, 0)
    a(f"s_sub_u32 s{SWO+2}, {1024*2048}, s{S_T0}")
    srd(a, SWS, 8, 9, WS_END)
    srd(a, SOUT, 6, 7, 2048 * 2048)
    a("v_lshrrev_b32 v2, 3, v0")
    a("v_and_b32 v3, 7, v0")
    a("v_bfe_u32 v4, v2, 1, 2")
    a("v_lshlrev_b32 v4, 1, v4")
    a("v_xor_b32 v4, v4, v3")
    a("v_lshlrev_b32 v4, 4, v4")
    a("v_lshl_add_u32 v4, v2, 11, v4")
    a(f"s_lshl_b32 s{S_T0}, s{S_WAVE}, 18")
    a(f"s_lshl_b32 s{S_T1}, s{S_WAVE}, 14")
    for i in range(16):
        a(f"s_add_u32 m0, s{S_T1}, {i*1024}")
        a(f"s_add_u32 s{S_I}, s{S_T0}, {i*8*2048}")
        a(f"buffer_load_dwordx4 v4, {sr(SWO,4)}, s{S_I} offen lds")
    a(f"s_lshl_b32 s{S_T0}, s{S_RB}, 3")
    a(f"s_lshl_b32 s{S_T1}, s{S_RG}, 1")
    a(f"s_add_u32 s{S_T0}, s{S_T0}, s{S_T1}")
    a(f"s_lshl_b32 s{S_T0}, s{S_T0}, 5")
    a(f"s_lshl_b32 s{S_T1}, s{S_KH}, 4")
    a(f"s_add_u32 s{S_T0}, s{S_T0}, s{S_T1}")
    a(f"s_lshl_b32 s{S_OB}, s{S_T0}, 10")
    a(f"s_add_u32 s{S_OB}, s{S_OB}, {WS_O}")
    a(f"s_add_u32 s39, s{S_OB}, {32*1024}")
    BF = 64
    def bf(h, b): return BF + (h * 2 + b) * 4
    for h in range(16):
        for b in range(2):
            so = S_OB if b == 0 else 39
            if h % 4 == 0 and h > 0 and b == 0:
                a(f"s_add_u32 s{S_OB}, s{S_OB}, 4096")
                a(f"s_add_u32 s39, s39, 4096")
            a(f"buffer_load_dwordx4 {vr(bf(h,b),4)}, v1, {sr(SWS,4)}, s{so} offen offset:{(h%4)*1024}")
    ACC = 8
    def acc(b, t): return ACC + (b * 4 + t) * 4
    for r in range(ACC, ACC + 32): a(f"v_mov_b32 v{r}, 0")
    AF = [40, 56]
    AF = [192, 208]
    a("v_lshrrev_b32 v2, 4, v0")
    a("v_bfe_u32 v3, v0, 2, 2")
    a("v_and_b32 v4, 1, v2")
    a("v_lshl_add_u32 v4, v4, 2, v3")
    a("v_lshrrev_b32 v5, 1, v2")
    a("v_lshl_add_u32 v5, v5, 4, v4")
    a("v_lshlrev_b32 v5, 7, v5")
    a("v_lshrrev_b32 v4, 1, v4")
    a("v_and_b32 v3, 3, v0")
    a("v_lshl_add_u32 v5, v3, 3, v5")
    a(f"s_lshl_b32 s{S_T0}, s{S_KH}, 16")
    a(f"v_add_u32 v5, s{S_T0}, v5")
    VA = 224
    for t in range(4):
        a(f"v_xor_b32 v7, {t}, v4")
        a(f"v_lshl_add_u32 v{VA+t}, v7, 5, v5")
    a("s_waitcnt vmcnt(32)")
    a("s_barrier")
    stamp(a, 1)
    def areads(c, h):
        o = []
        for t4 in range(4):
            for t in range(2):
                o.append(f"ds_read_b64_tr_b16 {vr(AF[c]+t4*4+2*t,2)}, v{VA+t4} offset:{h*4096+t*1024}")
        return o
    for x in areads(0, 0): a(x)
    for h in range(16):
        c = h % 2
        a(f"s_waitcnt vmcnt({30-2*h}) lgkmcnt(0)")
        rd = areads(1 - c, h + 1) if h < 15 else []
        k = 0
        for b in range(2):
            for t4 in range(4):
                a(mf16(acc(b, t4), AF[c] + 4 * t4, bf(h, b), acc(b, t4)))
                if k < len(rd): a(rd[k])
                k += 1
    stamp(a, 2)
    a("s_nop 7")
    a("s_barrier")
    ROWB = 272
    a("v_and_b32 v2, 15, v0")
    a(f"s_lshl_b32 s{S_T0}, s{S_RG}, 5")
    a(f"v_add_u32 v2, s{S_T0}, v2")
    a(f"v_mul_u32_u24 v2, {ROWB}, v2")
    a("v_lshrrev_b32 v3, 4, v0")
    a("v_lshl_add_u32 v2, v3, 4, v2")
    a(f"s_mul_i32 s{S_T0}, s{S_KH}, {128*ROWB}")
    a(f"v_add_u32 v2, s{S_T0}, v2")
    for b in range(2):
        for t4 in range(4):
            a(f"ds_write_b128 v2, {vr(acc(b,t4),4)} offset:{b*16*ROWB + t4*64}")
    a("s_waitcnt lgkmcnt(0)")
    a("s_barrier")
    a("v_lshrrev_b32 v2, 3, v6")
    a("v_and_b32 v3, 7, v6")
    a(f"v_mul_u32_u24 v4, {ROWB}, v2")
    a("v_lshl_add_u32 v4, v3, 5, v4")
    for i in range(2):
        for kh in range(2):
            for q in range(2):
                a(f"ds_read_b128 {vr(8+(i*4+kh*2+q)*4,4)}, v4 offset:{i*64*ROWB + kh*128*ROWB + q*16}")
    a(f"s_lshl_b32 s{S_T0}, s{S_RB}, 18")
    a(f"s_lshl_b32 s{S_T1}, s{S_CB}, 7")
    a(f"s_add_u32 s{S_T0}, s{S_T0}, s{S_T1}")
    a("v_lshlrev_b32 v5, 11, v2")
    a("v_lshl_add_u32 v5, v3, 4, v5")
    a(f"s_add_u32 s{S_T1}, s{S_T0}, {64*2048}")
    a("s_waitcnt lgkmcnt(0)")
    for i in range(2):
        b0 = 8 + i * 16
        for e in range(8):
            a(f"v_add_f32 v{b0+e}, v{b0+e}, v{b0+8+e}")
        for e in range(4):
            a(f"v_cvt_pk_bf16_f32 v{48+i*4+e}, v{b0+2*e}, v{b0+2*e+1}")
        a(f"buffer_store_dwordx4 {vr(48+i*4,4)}, v5, {sr(SOUT,4)}, s{S_T0 if i==0 else S_T1} offen")
    if gen.STAMP:
        a("s_waitcnt vmcnt(0)")
        stamp(a, 3)
        a(f"s_lshl_b32 s91, s2, 3")
        a(f"s_add_u32 s91, s91, s{S_WAVE}")
        stamp_flush(a, 4, 8, 9, 91)
    a(f"{name}_end:")
    a("s_endpgm")
    return a.text(), kernel_desc(name, 232, 96 if gen.STAMP else 64)

def launches():
    return [("attn_kernel", 256, 512, K2_NBUF * K2_SLOT), ("oproj_kernel", 256, 512, 131072)]
def parts():
    return [gen_k2("attn_kernel"), gen_k3("oproj_kernel")]
```

```python
import sys
def kernel(name, body, iters=200, init="", nv=256, acc=None, pre="", post=""):
    acc = acc or nv
    s = f"""
.text
.globl {name}
.p2align 8
.type {name},@function
{name}:
  s_load_dwordx2 s[4:5], s[0:1], 8
  s_load_dwordx2 s[6:7], s[0:1], 0
  v_lshrrev_b32 v1, 6, v0
  v_lshlrev_b32 v1, 3, v1
  s_lshl_b32 s3, s2, 7
  v_add_u32 v1, s3, v1
{init}
  s_waitcnt lgkmcnt(0)
{pre}
  s_barrier
  s_memtime s[8:9]
  s_waitcnt lgkmcnt(0)
  s_mov_b32 s10, {iters}
  .p2align 6
L_{name}:
{body}
  s_sub_u32 s10, s10, 1
  s_cmp_lg_u32 s10, 0
  s_cbranch_scc1 L_{name}
  s_memtime s[12:13]
  s_waitcnt lgkmcnt(0)
  s_sub_u32 s12, s12, s8
  v_mov_b32 v2, s12
  v_mov_b32 v3, 0
{post}
  v_and_b32 v4, 63, v0
  v_cmp_eq_u32 vcc, 0, v4
  s_and_saveexec_b64 s[14:15], vcc
  global_store_dwordx2 v1, v[2:3], s[4:5]
  s_waitcnt vmcnt(0)
  s_endpgm
.section .rodata,"a"
.p2align 6
.amdhsa_kernel {name}
  .amdhsa_next_free_vgpr {nv}
  .amdhsa_next_free_sgpr 64
  .amdhsa_accum_offset {acc}
  .amdhsa_group_segment_fixed_size 0
  .amdhsa_kernarg_size 24
  .amdhsa_user_sgpr_count 2
  .amdhsa_user_sgpr_kernarg_segment_ptr 1
  .amdhsa_system_sgpr_workgroup_id_x 1
  .amdhsa_float_denorm_mode_32 3
.end_amdhsa_kernel
"""
    meta = f"""  - .name: {name}
    .symbol: {name}.kd
    .kernarg_segment_size: 24
    .kernarg_segment_align: 8
    .group_segment_fixed_size: 0
    .private_segment_fixed_size: 0
    .wavefront_size: 64
    .sgpr_count: 64
    .vgpr_count: {nv}
    .max_flat_workgroup_size: 1024
    .args:
      - {{.name: a, .size: 8, .offset: 0, .value_kind: global_buffer, .address_space: global}}
      - {{.name: b, .size: 8, .offset: 8, .value_kind: global_buffer, .address_space: global}}
      - {{.name: c, .size: 8, .offset: 16, .value_kind: global_buffer, .address_space: global}}
"""
    return s, meta

def build(kernels, fname):
    out = '.amdgcn_target "amdgcn-amd-amdhsa--gfx950"\n'
    metas = ""
    for k in kernels:
        out += k[0]; metas += k[1]
    out += "\n.amdgpu_metadata\n---\namdhsa.version: [1, 2]\namdhsa.kernels:\n" + metas + "...\n.end_amdgpu_metadata\n"
    open(fname, "w").write(out)

def initv(lo, hi, val="1.0"):
    return "\n".join(f"  v_mov_b32 v{i}, {val}" for i in range(lo, hi))
```

```python
import sys, math

class A:
    def __init__(self): self.l = []
    def __call__(self, s=""):
        for ln in s.split("\n"):
            ln = ln.strip()
            if ln: self.l.append(("" if ln.endswith(":") else "  ") + ln)
    def c(self, s): self.l.append("  ; " + s)
    def text(self): return "\n".join(self.l) + "\n"

def vr(b, n): return f"v[{b}:{b+n-1}]" if n > 1 else f"v{b}"
def sr(b, n): return f"s[{b}:{b+n-1}]" if n > 1 else f"s{b}"
def mf32(d, a, b, c=None):
    cs = "0" if c is None else vr(c, 16)
    return f"v_mfma_f32_32x32x16_bf16 {vr(d,16)}, {vr(a,4)}, {vr(b,4)}, {cs}"
def mf16(d, a, b, c):
    return f"v_mfma_f32_16x16x32_bf16 {vr(d,4)}, {vr(a,4)}, {vr(b,4)}, {vr(c,4)}"

WS_Q   = 0
WS_KV  = 4 << 20
WS_O   = 12 << 20
WS_NRM = 16 << 20
WS_END = (16 << 20) + 16384
CSCALE = (32 ** -0.5) * math.log2(math.e)
import struct
def f2u(f): return struct.unpack("<I", struct.pack("<f", f))[0]

def kernel_header(a, name):
    a.l.append(f".globl {name}")
    a.l.append(".p2align 8")
    a.l.append(f".type {name},@function")
    a.l.append(f"{name}:")

def kernel_desc(name, vgpr, sgpr):
    acc = (vgpr + 3) // 4 * 4
    return f""".p2align 6
.amdhsa_kernel {name}
  .amdhsa_next_free_vgpr {vgpr}
  .amdhsa_next_free_sgpr {sgpr}
  .amdhsa_accum_offset {acc}
  .amdhsa_group_segment_fixed_size 0
  .amdhsa_kernarg_size 48
  .amdhsa_user_sgpr_count 2
  .amdhsa_user_sgpr_kernarg_segment_ptr 1
  .amdhsa_system_sgpr_workgroup_id_x 1
  .amdhsa_float_denorm_mode_32 3
  .amdhsa_float_denorm_mode_16_64 3
.end_amdhsa_kernel
"""

def srd(a, d, lo, hi, size):
    a(f"s_mov_b32 s{d}, s{lo}")
    a(f"s_and_b32 s{d+1}, s{hi}, 0xffff")
    a(f"s_mov_b32 s{d+2}, {size}")
    a(f"s_mov_b32 s{d+3}, 0x00020000")

def decode_wg(a, rb, hp, t0, t1):
    a(f"s_and_b32 s{t0}, s2, 7")
    a(f"s_lshr_b32 s{t1}, s2, 3")
    a(f"s_and_b32 s{rb}, s{t0}, 1")
    a(f"s_lshl_b32 s{rb}, s{rb}, 3")
    a(f"s_and_b32 s{hp}, s{t1}, 7")
    a(f"s_add_u32 s{rb}, s{rb}, s{hp}")
    a(f"s_lshr_b32 s{hp}, s{t0}, 1")
    a(f"s_lshl_b32 s{hp}, s{hp}, 2")
    a(f"s_lshr_b32 s{t1}, s{t1}, 3")
    a(f"s_add_u32 s{hp}, s{hp}, s{t1}")

def dpp_max32(a, v, tmp_nops=True):
    for ctl in ("row_shr:1", "row_shr:2", "row_shr:4", "row_shr:8"):
        a("s_nop 1")
        a(f"v_max_f32_dpp v{v}, v{v}, v{v} {ctl} row_mask:0xf bank_mask:0xf bound_ctrl:0")
    a("s_nop 1")
    a(f"v_max_f32_dpp v{v}, v{v}, v{v} row_bcast:15 row_mask:0xa bank_mask:0xf")

import os
STAMP = os.environ.get('STAMP','0')=='1'
STAMPK = int(os.environ.get('STAMPK','-1'))
WS_DBG = 20 << 20
def stamp(a, idx, sreg=60):
    if not STAMP: return
    a(f"s_memrealtime s[{sreg}:{sreg+1}]")
    a("s_waitcnt lgkmcnt(0)")
    a(f"s_mov_b32 s{64+idx}, s{sreg}")
    a(f"s_memtime s[{sreg}:{sreg+1}]")
    a("s_waitcnt lgkmcnt(0)")
    a(f"s_mov_b32 s{76+idx}, s{sreg}")
def stamp_flush(a, n, sws_lo, sws_hi, slot_sreg, vtmp=2):
    if not STAMP: return
    a(f"s_lshl_b32 s90, s{slot_sreg}, 7")
    a(f"s_add_u32 s90, s90, {WS_DBG}")
    a(f"s_add_u32 s92, s{sws_lo}, s90")
    a(f"s_addc_u32 s93, s{sws_hi}, 0")
    a(f"v_mov_b32 v{vtmp+1}, 0")
    for i in range(n):
        a(f"v_mov_b32 v{vtmp}, s{64+i}")
        a(f"global_store_dword v{vtmp+1}, v{vtmp}, s[92:93] offset:{4*i}")
        a(f"v_mov_b32 v{vtmp}, s{76+i}")
        a(f"global_store_dword v{vtmp+1}, v{vtmp}, s[92:93] offset:{64+4*i}")
    a("s_waitcnt vmcnt(0)")

K1_STAGE = 40960
K1_NBUF = 4
def gen_k1(name):
    a = A(); kernel_header(a, name)
    S_RB, S_HP, S_WAVE = 16, 17, 18
    SX, SW, SWS = 20, 24, 28
    S_KX, S_KW, S_BUF, S_CNT, S_T0, S_T1, S_DELTA = 32, 33, 34, 35, 36, 37, 38
    a("s_cmp_ge_u32 s2, 256")
    a(f"s_cbranch_scc1 {name}_end")
    a("s_load_dwordx4 s[4:7], s[0:1], 0")
    a("s_load_dwordx2 s[8:9], s[0:1], 40")
    decode_wg(a, S_RB, S_HP, S_T0, S_T1)
    a("v_lshrrev_b32 v1, 6, v0")
    a("v_and_b32 v0, 63, v0")
    a("s_nop 0")
    a(f"v_readfirstlane_b32 s{S_WAVE}, v1")
    a("s_waitcnt lgkmcnt(0)")
    a(f"s_lshl_b32 s{S_T0}, s{S_RB}, 18")
    a(f"s_add_u32 s4, s4, s{S_T0}")
    a("s_addc_u32 s5, s5, 0")
    srd(a, SX, 4, 5, 128 * 2048)
    a(f"s_lshl_b32 s{S_T0}, s{S_HP}, 7")
    a(f"s_add_u32 s6, s6, s{S_T0}")
    a("s_addc_u32 s7, s7, 0")
    srd(a, SW, 6, 7, 0)
    a(f"s_sub_u32 s{SW+2}, {1024*6144}, s{S_T0}")
    srd(a, SWS, 8, 9, WS_END)
    stamp(a, 0)
    a(f"s_cmp_ge_u32 s{S_WAVE}, 4")
    a(f"s_cbranch_scc1 {name}_loader")

    S_HH, S_RP = 40, 41
    ACC = 16
    def acc(g, s): return ACC + (g * 3 + s) * 16
    XF = [112, 132]
    def xf(c, g): return XF[c] + 4 * g
    def wf(c, s): return XF[c] + 8 + 4 * s
    VXA = 152
    VWA = 156
    a(f"s_lshr_b32 s{S_HH}, s{S_WAVE}, 1")
    a(f"s_and_b32 s{S_RP}, s{S_WAVE}, 1")
    a("v_and_b32 v2, 31, v0")
    a(f"s_lshl_b32 s{S_T0}, s{S_RP}, 6")
    a(f"v_add_u32 v2, s{S_T0}, v2")
    a("v_lshrrev_b32 v3, 5, v0")
    a("v_bfe_u32 v4, v2, 1, 3")
    a("v_xor_b32 v4, v4, v3")
    a("v_lshlrev_b32 v4, 4, v4")
    a(f"v_lshl_add_u32 v{VXA}, v2, 7, v4")
    for ks in range(1, 4):
        a(f"v_xor_b32 v{VXA+ks}, {ks*32}, v{VXA}")
    a("v_bfe_u32 v4, v0, 2, 2")
    a("v_lshl_add_u32 v5, v3, 3, v4")
    a("v_lshlrev_b32 v5, 7, v5")
    a("v_lshrrev_b32 v6, 1, v4")
    a(f"v_xor_b32 v6, s{S_HH}, v6")
    a("v_lshl_add_u32 v5, v6, 6, v5")
    a("v_bfe_u32 v6, v0, 4, 1")
    a("v_lshl_add_u32 v5, v6, 5, v5")
    a("v_and_b32 v6, 3, v0")
    a("v_lshl_add_u32 v5, v6, 3, v5")
    a(f"v_add_u32 v{VWA}, 16384, v5")
    for r in range(ACC, ACC + 96):
        a(f"v_mov_b32 v{r}, 0")
    def reads(c, ks):
        o = []
        for g in range(2):
            o.append(f"ds_read_b128 {vr(xf(c,g),4)}, v{VXA+ks} offset:{g*4096}")
        for s in range(3):
            for t in range(2):
                o.append(f"ds_read_b64_tr_b16 {vr(wf(c,s)+2*t,2)}, v{VWA} offset:{s*8192+ks*2048+t*512}")
        return o
    def mfmas(c):
        o = []
        for g in range(2):
            o.append(mf32(acc(g,0), wf(c,0), xf(c,g), acc(g,0)))
            o.append(mf32(acc(g,1), wf(c,1), xf(c,g), acc(g,1)))
            o.append(mf32(acc(g,2), xf(c,g), wf(c,2), acc(g,2)))
        return o
    def kstep(c, nxt_reads):
        m = mfmas(c)
        a("s_waitcnt lgkmcnt(0)")
        rd = list(nxt_reads)
        for i in range(6):
            a(m[i])
            if i < 4:
                for x in rd[2*i:2*i+2]: a(x)
    a(f"s_mov_b32 s{S_CNT}, 0")
    a(f"s_mov_b32 s39, {K1_STAGE}")
    a("s_barrier")
    stamp(a, 1)
    for x in reads(0, 0): a(x)
    a(f"{name}_cloop:")
    kstep(0, reads(1, 1))
    kstep(1, reads(0, 2))
    kstep(0, reads(1, 3))
    a("s_waitcnt lgkmcnt(0)")
    a(f"s_add_u32 s{S_CNT}, s{S_CNT}, 1")
    a(f"s_cmp_eq_u32 s{S_CNT}, 16")
    a(f"s_cbranch_scc1 {name}_clast")
    a("s_barrier")
    a(f"s_and_b32 s{S_T0}, s{S_CNT}, {K1_NBUF-1}")
    a(f"s_cmp_eq_u32 s{S_T0}, 0")
    a(f"s_cselect_b32 s{S_DELTA}, {-(K1_NBUF-1)*K1_STAGE & 0xffffffff}, s39")
    m = mfmas(1)
    a(m[0])
    for ks in range(4): a(f"v_add_u32 v{VXA+ks}, s{S_DELTA}, v{VXA+ks}")
    a(f"v_add_u32 v{VWA}, s{S_DELTA}, v{VWA}")
    rd = reads(0, 0)
    for i in range(1, 6):
        a(m[i])
        if i < 5:
            for x in rd[2*(i-1):2*(i-1)+2]: a(x)
    a(f"s_branch {name}_cloop")
    a(f"{name}_clast:")
    for x in mfmas(1): a(x)
    stamp(a, 2)
    a("s_nop 15")
    a("s_nop 3")
    S_H, S_TILE, S_C = 42, 43, 44
    a(f"s_lshl_b32 s{S_H}, s{S_HP}, 1")
    a(f"s_add_u32 s{S_H}, s{S_H}, s{S_HH}")
    a(f"s_lshl_b32 s{S_TILE}, s{S_RB}, 2")
    a(f"s_lshl_b32 s{S_T0}, s{S_RP}, 1")
    a(f"s_add_u32 s{S_TILE}, s{S_TILE}, s{S_T0}")
    a(f"s_mov_b32 s{S_C}, {f2u(CSCALE)}")
    a("v_lshlrev_b32 v1, 4, v0")
    FR = 112
    def fr(g, s): return FR + (g * 3 + s) * 8
    S_OKV, S_OQ = 45, 46
    a(f"s_lshl_b32 s{S_T0}, s{S_H}, 6")
    a(f"s_add_u32 s{S_T0}, s{S_T0}, s{S_TILE}")
    a(f"s_lshl_b32 s{S_OKV}, s{S_T0}, 12")
    a(f"s_add_u32 s{S_OKV}, s{S_OKV}, {WS_KV}")
    a(f"s_lshl_b32 s{S_OQ}, s{S_T0}, 11")
    if WS_Q: a(f"s_add_u32 s{S_OQ}, s{S_OQ}, {WS_Q}")
    for g in range(2):
        for s in (1, 2):
            for i in range(8):
                a(f"v_cvt_pk_bf16_f32 v{fr(g,s)+i}, v{acc(g,s)+2*i}, v{acc(g,s)+2*i+1}")
        for s in (1, 2):
            for f in range(2):
                a(f"buffer_store_dwordx4 {vr(fr(g,s)+4*f,4)}, v1, {sr(SWS,4)}, s{S_OKV} offen offset:{(s-1)*2048+f*1024}")
        if g == 0: a(f"s_add_u32 s{S_OKV}, s{S_OKV}, 4096")
    for g in range(2):
        for i in range(16):
            a(f"v_mul_f32 v{acc(g,0)+i}, s{S_C}, v{acc(g,0)+i}")
        for i in range(8):
            a(f"v_cvt_pk_bf16_f32 v{fr(g,0)+i}, v{acc(g,0)+2*i}, v{acc(g,0)+2*i+1}")
        for f in range(2):
            a(f"buffer_store_dwordx4 {vr(fr(g,0)+4*f,4)}, v1, {sr(SWS,4)}, s{S_OQ} offen offset:{f*1024}")
        if g == 0: a(f"s_add_u32 s{S_OQ}, s{S_OQ}, 2048")
    NR = 16
    for g in range(2):
        for s in range(3):
            r = NR + g * 3 + s
            a(f"v_mov_b32 v{r}, 0")
    a("s_nop 0")
    for i in range(8):
        for g in range(2):
            for s in range(3):
                r = NR + g * 3 + s
                a(f"v_dot2_f32_bf16 v{r}, v{fr(g,s)+i}, v{fr(g,s)+i}, v{r}")
    a("s_nop 3")
    for g in range(2):
        for s in range(2):
            r = NR + g * 3 + s
            a(f"v_mov_b32 v{NR+8+g*2+s}, v{r}")
    a("s_nop 1")
    for g in range(2):
        for s in range(2):
            r = NR + g * 3 + s
            a(f"v_permlane32_swap_b32 v{r}, v{NR+8+g*2+s}")
    a("s_nop 1")
    for g in range(2):
        for s in range(2):
            r = NR + g * 3 + s
            a(f"v_add_f32 v{r}, v{r}, v{NR+8+g*2+s}")
    for s in range(3):
        a(f"v_max_f32 v{NR+s}, v{NR+s}, v{NR+3+s}")
    for ctl in ("row_shr:1", "row_shr:2", "row_shr:4", "row_shr:8"):
        a("s_nop 1")
        for s in range(3):
            a(f"v_max_f32_dpp v{NR+s}, v{NR+s}, v{NR+s} {ctl} row_mask:0xf bank_mask:0xf bound_ctrl:0")
    a("s_nop 1")
    for s in range(3):
        a(f"v_max_f32_dpp v{NR+s}, v{NR+s}, v{NR+s} row_bcast:15 row_mask:0xa bank_mask:0xf")
    a("s_nop 1")
    for s in range(3):
        a(f"v_max_f32_dpp v{NR+s}, v{NR+s}, v{NR+s} row_bcast:31 row_mask:0xc bank_mask:0xf")
    a(f"v_mov_b32 v{NR+3}, 0")
    a(f"s_lshl_b32 s{S_T0}, s{S_H}, 5")
    a(f"s_lshl_b32 s{S_T1}, s{S_RB}, 1")
    a(f"s_add_u32 s{S_T0}, s{S_T0}, s{S_T1}")
    a(f"s_add_u32 s{S_T0}, s{S_T0}, s{S_RP}")
    a(f"s_lshl_b32 s{S_T0}, s{S_T0}, 4")
    a(f"s_add_u32 s{S_T0}, s{S_T0}, {WS_NRM}")
    a("v_cmp_eq_u32 vcc, 63, v0")
    a("s_and_saveexec_b64 s[48:49], vcc")
    a("v_mov_b32 v2, 0")
    a(f"buffer_store_dwordx4 {vr(NR,4)}, v2, {sr(SWS,4)}, s{S_T0} offen")
    if STAMP:
        stamp(a, 3)
        a("s_waitcnt vmcnt(0)")
        stamp(a, 4)
        a(f"s_lshl_b32 s91, s2, 3")
        a(f"s_add_u32 s91, s91, s{S_WAVE}")
        stamp_flush(a, 5, 8, 9, 91)
    a("s_endpgm")

    a(f"{name}_loader:")
    S_J = 40
    a(f"s_sub_u32 s{S_J}, s{S_WAVE}, 4")
    VX, VW = 8, 12
    a("v_lshrrev_b32 v2, 3, v0")
    a("v_and_b32 v3, 7, v0")
    a("v_lshrrev_b32 v4, 1, v2")
    for i in range(4):
        a(f"v_add_u32 v5, {(4*i)&7}, v4")
        a("v_and_b32 v5, 7, v5")
        a("v_xor_b32 v5, v5, v3")
        a("v_lshlrev_b32 v5, 4, v5")
        a(f"s_lshl_b32 s{S_T0}, s{S_J}, 5")
        a(f"s_add_u32 s{S_T0}, s{S_T0}, {8*i}")
        a(f"v_add_u32 v6, s{S_T0}, v2")
        a(f"v_lshl_add_u32 v{VX+i}, v6, 11, v5")
    a("v_and_b32 v5, 1, v4")
    a("v_lshlrev_b32 v5, 2, v5")
    a("v_xor_b32 v5, v5, v3")
    a("v_lshlrev_b32 v5, 4, v5")
    a(f"s_mov_b32 s{S_T1}, 6144")
    for gi in range(2):
        a(f"s_lshl_b32 s{S_T0}, s{S_J}, 4")
        a(f"s_add_u32 s{S_T0}, s{S_T0}, {8*gi}")
        a(f"v_add_u32 v6, s{S_T0}, v2")
        a(f"v_mul_lo_u32 v6, v6, s{S_T1}")
        a("v_add_u32 v6, v6, v5")
        for s in range(3):
            a(f"v_add_u32 v{VW+s*2+gi}, {s*2048}, v6")
    S_LX, S_LW = 41, 42
    a(f"s_lshl_b32 s{S_LX}, s{S_J}, 12")
    a(f"s_lshl_b32 s{S_LW}, s{S_J}, 11")
    a(f"s_add_u32 s{S_LW}, s{S_LW}, 16384")
    a(f"s_mov_b32 s{S_KX}, 0")
    a(f"s_mov_b32 s{S_KW}, 0")
    a(f"s_mov_b32 s{S_BUF}, 0")
    def issue_stage():
        a(f"s_add_u32 s{S_T0}, s{S_BUF}, s{S_LX}")
        a(f"s_add_u32 s{S_T1}, s{S_BUF}, s{S_LW}")
        for i in range(4):
            a(f"s_add_u32 m0, s{S_T0}, {i*1024}")
            a("s_nop 0")
            a(f"buffer_load_dwordx4 v{VX+i}, {sr(SX,4)}, s{S_KX} offen lds")
        for s in range(3):
            for gi in range(2):
                a(f"s_add_u32 m0, s{S_T1}, {s*8192+gi*1024}")
                a("s_nop 0")
                a(f"buffer_load_dwordx4 v{VW+s*2+gi}, {sr(SW,4)}, s{S_KW} offen lds")
        a(f"s_add_u32 s{S_KX}, s{S_KX}, 128")
        a(f"s_add_u32 s{S_KW}, s{S_KW}, {64*6144}")
        a(f"s_add_u32 s{S_BUF}, s{S_BUF}, {K1_STAGE}")
        a(f"s_cmp_eq_u32 s{S_BUF}, {K1_NBUF*K1_STAGE}")
        a(f"s_cselect_b32 s{S_BUF}, 0, s{S_BUF}")
    for s in range(K1_NBUF - 1): issue_stage()
    a(f"s_waitcnt vmcnt({10*(K1_NBUF-2)})")
    a("s_barrier")
    a(f"s_mov_b32 s{S_CNT}, 0")
    NFULL = 16 - (K1_NBUF - 1)
    a(f"{name}_lloop:")
    issue_stage()
    a(f"s_waitcnt vmcnt({10*(K1_NBUF-2)})")
    a("s_barrier")
    a(f"s_add_u32 s{S_CNT}, s{S_CNT}, 1")
    a(f"s_cmp_lt_u32 s{S_CNT}, {NFULL}")
    a(f"s_cbranch_scc1 {name}_lloop")
    for k in range(NFULL, 15):
        left = 15 - k
        a(f"s_waitcnt vmcnt({10*(left-1)})")
        a("s_barrier")
    a(f"{name}_end:")
    a("s_endpgm")
    return a.text(), kernel_desc(name, 160, 96 if STAMP else 64)

def main(out):
    launches = [("qkv_kernel", 256, 512, K1_NBUF * K1_STAGE)]
    parts = [gen_k1("qkv_kernel")]
    if "k2" in globals() or True:
        try:
            import gen23
            launches += gen23.launches()
            parts += gen23.parts()
        except ImportError:
            pass
    hdr = ""
    for (n, g, b, lds) in launches:
        hdr += f"; @launch kernel={n} grid=({g},1,1) block=({b},1,1) lds={lds}\n"
    s = hdr + '.amdgcn_target "amdgcn-amd-amdhsa--gfx950"\n.text\n'
    for t, d in parts: s += t
    s += '.section .rodata,"a"\n'
    for t, d in parts: s += d
    open(out, "w").write(s)

if __name__ == "__main__":
    main(sys.argv[1] if len(sys.argv) > 1 else "k.s")
```

```python
import sys, math

class A:
    def __init__(self): self.l = []
    def __call__(self, s=""):
        for ln in s.split("\n"):
            ln = ln.strip()
            if ln: self.l.append(("" if ln.endswith(":") else "  ") + ln)
    def c(self, s): self.l.append("  ; " + s)
    def text(self): return "\n".join(self.l) + "\n"

def vr(b, n): return f"v[{b}:{b+n-1}]" if n > 1 else f"v{b}"
def sr(b, n): return f"s[{b}:{b+n-1}]" if n > 1 else f"s{b}"
def mf32(d, a, b, c=None):
    cs = "0" if c is None else vr(c, 16)
    return f"v_mfma_f32_32x32x16_bf16 {vr(d,16)}, {vr(a,4)}, {vr(b,4)}, {cs}"
def mf16(d, a, b, c):
    return f"v_mfma_f32_16x16x32_bf16 {vr(d,4)}, {vr(a,4)}, {vr(b,4)}, {vr(c,4)}"

WS_Q   = 0
WS_KV  = 4 << 20
WS_O   = 12 << 20
WS_NRM = 16 << 20
WS_END = (16 << 20) + 16384
CSCALE = (32 ** -0.5) * math.log2(math.e)
import struct
def f2u(f): return struct.unpack("<I", struct.pack("<f", f))[0]

def kernel_header(a, name):
    a.l.append(f".globl {name}")
    a.l.append(".p2align 8")
    a.l.append(f".type {name},@function")
    a.l.append(f"{name}:")

def kernel_desc(name, vgpr, sgpr):
    acc = (vgpr + 3) // 4 * 4
    return f""".p2align 6
.amdhsa_kernel {name}
  .amdhsa_next_free_vgpr {vgpr}
  .amdhsa_next_free_sgpr {sgpr}
  .amdhsa_accum_offset {acc}
  .amdhsa_group_segment_fixed_size 0
  .amdhsa_kernarg_size 48
  .amdhsa_user_sgpr_count 2
  .amdhsa_user_sgpr_kernarg_segment_ptr 1
  .amdhsa_system_sgpr_workgroup_id_x 1
  .amdhsa_float_denorm_mode_32 3
  .amdhsa_float_denorm_mode_16_64 3
.end_amdhsa_kernel
"""

def srd(a, d, lo, hi, size):
    a(f"s_mov_b32 s{d}, s{lo}")
    a(f"s_and_b32 s{d+1}, s{hi}, 0xffff")
    a(f"s_mov_b32 s{d+2}, {size}")
    a(f"s_mov_b32 s{d+3}, 0x00020000")

def decode_wg(a, rb, hp, t0, t1):
    a(f"s_and_b32 s{t0}, s2, 7")
    a(f"s_lshr_b32 s{t1}, s2, 3")
    a(f"s_and_b32 s{rb}, s{t0}, 1")
    a(f"s_lshl_b32 s{rb}, s{rb}, 3")
    a(f"s_and_b32 s{hp}, s{t1}, 7")
    a(f"s_add_u32 s{rb}, s{rb}, s{hp}")
    a(f"s_lshr_b32 s{hp}, s{t0}, 1")
    a(f"s_lshl_b32 s{hp}, s{hp}, 2")
    a(f"s_lshr_b32 s{t1}, s{t1}, 3")
    a(f"s_add_u32 s{hp}, s{hp}, s{t1}")

def dpp_max32(a, v, tmp_nops=True):
    for ctl in ("row_shr:1", "row_shr:2", "row_shr:4", "row_shr:8"):
        a("s_nop 1")
        a(f"v_max_f32_dpp v{v}, v{v}, v{v} {ctl} row_mask:0xf bank_mask:0xf bound_ctrl:0")
    a("s_nop 1")
    a(f"v_max_f32_dpp v{v}, v{v}, v{v} row_bcast:15 row_mask:0xa bank_mask:0xf")

import os
STAMP = os.environ.get('STAMP','0')=='1'
STAMPK = int(os.environ.get('STAMPK','-1'))
WS_DBG = 20 << 20
STAMP_BASE = [0]
def stamp(a, idx, sreg=60):
    if not STAMP: return
    a(f"s_memrealtime s[{sreg}:{sreg+1}]")
    a("s_waitcnt lgkmcnt(0)")
    a(f"s_mov_b32 s{64+idx}, s{sreg}")
    a(f"s_memtime s[{sreg}:{sreg+1}]")
    a("s_waitcnt lgkmcnt(0)")
    a(f"s_mov_b32 s{76+idx}, s{sreg}")
def stamp_flush(a, n, sws_lo, sws_hi, slot_sreg, vtmp=2):
    if not STAMP: return
    a(f"s_lshl_b32 s90, s{slot_sreg}, 7")
    a(f"s_add_u32 s90, s90, {WS_DBG + STAMP_BASE[0]}")
    a(f"s_add_u32 s92, s{sws_lo}, s90")
    a(f"s_addc_u32 s93, s{sws_hi}, 0")
    a(f"v_mov_b32 v{vtmp+1}, 0")
    for i in range(n):
        a(f"v_mov_b32 v{vtmp}, s{64+i}")
        a(f"global_store_dword v{vtmp+1}, v{vtmp}, s[92:93] offset:{4*i}")
        a(f"v_mov_b32 v{vtmp}, s{76+i}")
        a(f"global_store_dword v{vtmp+1}, v{vtmp}, s[92:93] offset:{64+4*i}")
    a("s_waitcnt vmcnt(0)")

K1_STAGE = 40960
K1_NBUF = 4
ROT = int(os.environ.get("ROT", "1"))

def k1_loader_setup(a, S_J, S_HP_unused, T0, T1):
    VX, VW = 8, 12
    a("v_lshrrev_b32 v2, 3, v0")
    a("v_and_b32 v3, 7, v0")
    a("v_lshrrev_b32 v4, 1, v2")
    for i in range(4):
        a(f"v_add_u32 v5, {(4*i)&7}, v4")
        a("v_and_b32 v5, 7, v5")
        a("v_xor_b32 v5, v5, v3")
        a("v_lshlrev_b32 v5, 4, v5")
        a(f"s_lshl_b32 s{T0}, s{S_J}, 5")
        a(f"s_add_u32 s{T0}, s{T0}, {8*i}")
        a(f"v_add_u32 v6, s{T0}, v2")
        a(f"v_lshl_add_u32 v{VX+i}, v6, 11, v5")
    a("v_and_b32 v5, 1, v4")
    a("v_lshlrev_b32 v5, 2, v5")
    a("v_xor_b32 v5, v5, v3")
    a(f"s_mov_b32 s{T1}, 6144")
    for gi in range(2):
        a(f"v_xor_b32 v7, {gi<<1}, v5")
        a("v_lshlrev_b32 v7, 4, v7")
        a(f"s_lshl_b32 s{T0}, s{S_J}, 4")
        a(f"s_add_u32 s{T0}, s{T0}, {8*gi}")
        a(f"v_add_u32 v6, s{T0}, v2")
        a(f"v_mul_lo_u32 v6, v6, s{T1}")
        a("v_add_u32 v6, v6, v7")
        for s in range(3):
            a(f"v_add_u32 v{VW+s*2+gi}, {s*2048}, v6")
    return VX, VW

def gen_k1(name):
    STAMP_BASE[0] = 0
    a = A(); kernel_header(a, name)
    S_RB, S_HP, S_WAVE = 16, 17, 18
    SX, SW, SWS = 20, 24, 28
    S_KX, S_KW, S_BUF, S_CNT, S_T0, S_T1, S_DELTA = 32, 33, 34, 35, 36, 37, 38
    a("s_cmp_ge_u32 s2, 256")
    a(f"s_cbranch_scc1 {name}_end")
    a("s_load_dwordx4 s[4:7], s[0:1], 0")
    a("s_load_dwordx2 s[8:9], s[0:1], 40")
    decode_wg(a, S_RB, S_HP, S_T0, S_T1)
    a("v_lshrrev_b32 v1, 6, v0")
    a("v_and_b32 v0, 63, v0")
    a("s_nop 0")
    a(f"v_readfirstlane_b32 s{S_WAVE}, v1")
    a("s_waitcnt lgkmcnt(0)")
    a(f"s_lshl_b32 s{S_T0}, s{S_RB}, 18")
    a(f"s_add_u32 s4, s4, s{S_T0}")
    a("s_addc_u32 s5, s5, 0")
    srd(a, SX, 4, 5, 128 * 2048)
    a(f"s_lshl_b32 s{S_T0}, s{S_HP}, 7")
    a(f"s_add_u32 s6, s6, s{S_T0}")
    a("s_addc_u32 s7, s7, 0")
    srd(a, SW, 6, 7, 0)
    a(f"s_sub_u32 s{SW+2}, {1024*6144}, s{S_T0}")
    srd(a, SWS, 8, 9, WS_END)
    stamp(a, 0)
    a(f"s_cmp_ge_u32 s{S_WAVE}, 4")
    a(f"s_cbranch_scc1 {name}_loader")

    S_HH, S_RP = 40, 41
    ACC = 16
    def acc(s, b4, aa): return ACC + ((s * 4 + b4) * 2 + aa) * 4
    FB = [112, 152]
    def xf(c, b4): return FB[c] + 4 * b4
    def wf(c, s, aa): return FB[c] + 16 + (s * 2 + aa) * 4
    VXA = 192
    VWA = 194
    a(f"s_lshr_b32 s{S_HH}, s{S_WAVE}, 1")
    a(f"s_and_b32 s{S_RP}, s{S_WAVE}, 1")
    a("v_and_b32 v2, 15, v0")
    a("v_lshrrev_b32 v3, 4, v0")
    a(f"s_lshl_b32 s{S_T0}, s{S_RP}, 6")
    a(f"v_add_u32 v5, s{S_T0}, v2")
    a("v_lshrrev_b32 v4, 1, v2")
    a("v_xor_b32 v4, v4, v3")
    a("v_lshlrev_b32 v4, 4, v4")
    a(f"v_lshl_add_u32 v{VXA}, v5, 7, v4")
    a(f"v_xor_b32 v{VXA+1}, 64, v{VXA}")
    a("v_bfe_u32 v4, v0, 2, 2")
    a("v_lshl_add_u32 v5, v3, 3, v4")
    a("v_lshlrev_b32 v5, 7, v5")
    a("v_lshrrev_b32 v6, 1, v4")
    a(f"v_xor_b32 v6, s{S_HH}, v6")
    a("v_lshl_add_u32 v5, v6, 6, v5")
    a("v_and_b32 v6, 1, v3")
    a("v_lshl_add_u32 v5, v6, 5, v5")
    a("v_and_b32 v6, 3, v0")
    a("v_lshl_add_u32 v5, v6, 3, v5")
    a(f"v_add_u32 v{VWA}, 16384, v5")
    a(f"v_xor_b32 v{VWA+1}, 32, v{VWA}")
    for r in range(ACC, ACC + 96):
        a(f"v_mov_b32 v{r}, 0")
    def reads(c, ks):
        o = []
        for b4 in range(4):
            o.append(f"ds_read_b128 {vr(xf(c,b4),4)}, v{VXA+ks} offset:{b4*2048}")
        for s in range(3):
            for aa in range(2):
                for t in range(2):
                    o.append(f"ds_read_b64_tr_b16 {vr(wf(c,s,aa)+2*t,2)}, v{VWA+aa} offset:{s*8192+ks*4096+t*512}")
        return o
    def mfmas(c):
        o = []
        for b4 in range(4):
            for s in range(2):
                for aa in range(2):
                    o.append(mf16(acc(s,b4,aa), wf(c,s,aa), xf(c,b4), acc(s,b4,aa)))
            for aa in range(2):
                o.append(mf16(acc(2,b4,aa), xf(c,b4), wf(c,2,aa), acc(2,b4,aa)))
        return o
    def inter(m, rd, first=0):
        k = 0
        for i, x in enumerate(m):
            a(x)
            if i >= first and k < len(rd):
                a(rd[k]); k += 1
        assert k == len(rd)
    a(f"s_mov_b32 s{S_CNT}, 0")
    a(f"s_mov_b32 s39, {K1_STAGE}")
    a("s_barrier")
    stamp(a, 1)
    for x in reads(0, 0): a(x)
    a(f"{name}_cloop:")
    a("s_waitcnt lgkmcnt(0)")
    inter(mfmas(0), reads(1, 1))
    a("s_waitcnt lgkmcnt(0)")
    a(f"s_add_u32 s{S_CNT}, s{S_CNT}, 1")
    a(f"s_cmp_eq_u32 s{S_CNT}, 16")
    a(f"s_cbranch_scc1 {name}_clast")
    a("s_barrier")
    a(f"s_and_b32 s{S_T0}, s{S_CNT}, {K1_NBUF-1}")
    a(f"s_cmp_eq_u32 s{S_T0}, 0")
    a(f"s_cselect_b32 s{S_DELTA}, {-(K1_NBUF-1)*K1_STAGE & 0xffffffff}, s39")
    m = mfmas(1)
    a(m[0])
    for ks in range(2): a(f"v_add_u32 v{VXA+ks}, s{S_DELTA}, v{VXA+ks}")
    for aa in range(2): a(f"v_add_u32 v{VWA+aa}, s{S_DELTA}, v{VWA+aa}")
    inter(m[1:], reads(0, 0))
    a(f"s_branch {name}_cloop")
    a(f"{name}_clast:")
    for x in mfmas(1): a(x)
    stamp(a, 2)
    a("s_nop 7")
    S_H, S_TILE, S_C = 42, 43, 44
    a(f"s_lshl_b32 s{S_H}, s{S_HP}, 1")
    a(f"s_add_u32 s{S_H}, s{S_H}, s{S_HH}")
    a(f"s_lshl_b32 s{S_TILE}, s{S_RB}, 2")
    a(f"s_lshl_b32 s{S_T0}, s{S_RP}, 1")
    a(f"s_add_u32 s{S_TILE}, s{S_TILE}, s{S_T0}")
    a(f"s_mov_b32 s{S_C}, {f2u(CSCALE)}")
    a("v_lshlrev_b32 v1, 4, v0")
    FR = 112
    def fr(g, s): return FR + (g * 3 + s) * 8
    S_OKV, S_OQ = 45, 46
    a(f"s_lshl_b32 s{S_T0}, s{S_H}, 6")
    a(f"s_add_u32 s{S_T0}, s{S_T0}, s{S_TILE}")
    a(f"s_lshl_b32 s{S_OKV}, s{S_T0}, 12")
    a(f"s_add_u32 s{S_OKV}, s{S_OKV}, {WS_KV}")
    a(f"s_lshl_b32 s{S_OQ}, s{S_T0}, 11")
    if WS_Q: a(f"s_add_u32 s{S_OQ}, s{S_OQ}, {WS_Q}")
    def pack_qk(g, s):
        for aa in range(2):
            for b in range(2):
                src = acc(s, 2 * g + b, aa)
                for i in range(2):
                    a(f"v_cvt_pk_bf16_f32 v{fr(g,s)+aa*4+b*2+i}, v{src+2*i}, v{src+2*i+1}")
        a("s_nop 0")
        for aa in range(2):
            for i in range(2):
                a(f"v_permlane16_swap_b32 v{fr(g,s)+aa*4+i}, v{fr(g,s)+aa*4+2+i}")
    def pack_v(g):
        for b in range(2):
            for aa in range(2):
                src = acc(2, 2 * g + b, aa)
                for i in range(2):
                    a(f"v_cvt_pk_bf16_f32 v{fr(g,2)+b*4+aa*2+i}, v{src+2*i}, v{src+2*i+1}")
        a("s_nop 0")
        for b in range(2):
            for i in range(2):
                a(f"v_permlane16_swap_b32 v{fr(g,2)+b*4+i}, v{fr(g,2)+b*4+2+i}")
        a("s_nop 0")
        for b in range(2):
            for i in range(2):
                a(f"v_permlane32_swap_b32 v{fr(g,2)+b*4+i}, v{fr(g,2)+b*4+2+i}")
    for g in range(2):
        pack_qk(g, 1); pack_v(g)
        for s in (1, 2):
            for f in range(2):
                a(f"buffer_store_dwordx4 {vr(fr(g,s)+4*f,4)}, v1, {sr(SWS,4)}, s{S_OKV} offen offset:{(s-1)*2048+f*1024}")
        if g == 0: a(f"s_add_u32 s{S_OKV}, s{S_OKV}, 4096")
    for g in range(2):
        for b in range(2):
            for aa in range(2):
                for i in range(4):
                    r = acc(0, 2 * g + b, aa) + i
                    a(f"v_mul_f32 v{r}, s{S_C}, v{r}")
        pack_qk(g, 0)
        a("s_nop 0")
        for f in range(2):
            a(f"buffer_store_dwordx4 {vr(fr(g,0)+4*f,4)}, v1, {sr(SWS,4)}, s{S_OQ} offen offset:{f*1024}")
        if g == 0: a(f"s_add_u32 s{S_OQ}, s{S_OQ}, 2048")
    NR = 16
    for g in range(2):
        for s in range(3):
            a(f"v_mov_b32 v{NR+g*3+s}, 0")
    a("s_nop 0")
    for i in range(8):
        for g in range(2):
            for s in range(3):
                r = NR + g * 3 + s
                a(f"v_dot2_f32_bf16 v{r}, v{fr(g,s)+i}, v{fr(g,s)+i}, v{r}")
    a("s_nop 3")
    for g in range(2):
        for s in range(2):
            a(f"v_mov_b32 v{NR+8+g*2+s}, v{NR+g*3+s}")
    a("s_nop 1")
    for g in range(2):
        for s in range(2):
            a(f"v_permlane32_swap_b32 v{NR+g*3+s}, v{NR+8+g*2+s}")
    a("s_nop 1")
    for g in range(2):
        for s in range(2):
            r = NR + g * 3 + s
            a(f"v_add_f32 v{r}, v{r}, v{NR+8+g*2+s}")
    for s in range(3):
        a(f"v_max_f32 v{NR+s}, v{NR+s}, v{NR+3+s}")
    for ctl in ("row_shr:1", "row_shr:2", "row_shr:4", "row_shr:8"):
        a("s_nop 1")
        for s in range(3):
            a(f"v_max_f32_dpp v{NR+s}, v{NR+s}, v{NR+s} {ctl} row_mask:0xf bank_mask:0xf bound_ctrl:0")
    a("s_nop 1")
    for s in range(3):
        a(f"v_max_f32_dpp v{NR+s}, v{NR+s}, v{NR+s} row_bcast:15 row_mask:0xa bank_mask:0xf")
    a("s_nop 1")
    for s in range(3):
        a(f"v_max_f32_dpp v{NR+s}, v{NR+s}, v{NR+s} row_bcast:31 row_mask:0xc bank_mask:0xf")
    a(f"v_mov_b32 v{NR+3}, 0")
    a(f"s_lshl_b32 s{S_T0}, s{S_H}, 5")
    a(f"s_lshl_b32 s{S_T1}, s{S_RB}, 1")
    a(f"s_add_u32 s{S_T0}, s{S_T0}, s{S_T1}")
    a(f"s_add_u32 s{S_T0}, s{S_T0}, s{S_RP}")
    a(f"s_lshl_b32 s{S_T0}, s{S_T0}, 4")
    a(f"s_add_u32 s{S_T0}, s{S_T0}, {WS_NRM}")
    a("v_cmp_eq_u32 vcc, 63, v0")
    a("s_and_saveexec_b64 s[48:49], vcc")
    a("v_mov_b32 v2, 0")
    a(f"buffer_store_dwordx4 {vr(NR,4)}, v2, {sr(SWS,4)}, s{S_T0} offen")
    if STAMP:
        stamp(a, 3)
        a("s_waitcnt vmcnt(0)")
        stamp(a, 4)
        a(f"s_lshl_b32 s91, s2, 3")
        a(f"s_add_u32 s91, s91, s{S_WAVE}")
        stamp_flush(a, 5, 8, 9, 91)
    a("s_endpgm")

    a(f"{name}_loader:")
    S_J = 40
    a(f"s_sub_u32 s{S_J}, s{S_WAVE}, 4")
    VX, VW = k1_loader_setup(a, S_J, S_HP, S_T0, S_T1)
    S_LX, S_LW, S_ST = 41, 42, 43
    a(f"s_lshl_b32 s{S_LX}, s{S_J}, 12")
    a(f"s_lshl_b32 s{S_LW}, s{S_J}, 11")
    a(f"s_add_u32 s{S_LW}, s{S_LW}, 16384")
    if ROT:
        a(f"s_and_b32 s{S_ST}, s{S_RB}, 7")
        a(f"s_lshl_b32 s{S_ST}, s{S_ST}, 1")
        a(f"s_and_b32 s{S_T0}, s{S_HP}, 3")
        a(f"s_lshl_b32 s{S_T0}, s{S_T0}, 2")
        a(f"s_add_u32 s{S_ST}, s{S_ST}, s{S_T0}")
        a(f"s_and_b32 s{S_ST}, s{S_ST}, 15")
    else:
        a(f"s_mov_b32 s{S_ST}, 0")
    a(f"s_mov_b32 s{S_BUF}, 0")
    def issue_stage():
        a(f"s_lshl_b32 s{S_KX}, s{S_ST}, 7")
        a(f"s_mul_i32 s{S_KW}, s{S_ST}, {64*6144}")
        a(f"s_add_u32 s{S_T0}, s{S_BUF}, s{S_LX}")
        a(f"s_add_u32 s{S_T1}, s{S_BUF}, s{S_LW}")
        for i in range(4):
            a(f"s_add_u32 m0, s{S_T0}, {i*1024}")
            a("s_nop 0")
            a(f"buffer_load_dwordx4 v{VX+i}, {sr(SX,4)}, s{S_KX} offen lds")
        for s in range(3):
            for gi in range(2):
                a(f"s_add_u32 m0, s{S_T1}, {s*8192+gi*1024}")
                a("s_nop 0")
                a(f"buffer_load_dwordx4 v{VW+s*2+gi}, {sr(SW,4)}, s{S_KW} offen lds")
        a(f"s_add_u32 s{S_ST}, s{S_ST}, 1")
        a(f"s_and_b32 s{S_ST}, s{S_ST}, 15")
        a(f"s_add_u32 s{S_BUF}, s{S_BUF}, {K1_STAGE}")
        a(f"s_cmp_eq_u32 s{S_BUF}, {K1_NBUF*K1_STAGE}")
        a(f"s_cselect_b32 s{S_BUF}, 0, s{S_BUF}")
    for s in range(K1_NBUF - 1): issue_stage()
    a(f"s_waitcnt vmcnt({10*(K1_NBUF-2)})")
    a("s_barrier")
    a(f"s_mov_b32 s{S_CNT}, 0")
    NFULL = 16 - (K1_NBUF - 1)
    a(f"{name}_lloop:")
    issue_stage()
    a(f"s_waitcnt vmcnt({10*(K1_NBUF-2)})")
    a("s_barrier")
    a(f"s_add_u32 s{S_CNT}, s{S_CNT}, 1")
    a(f"s_cmp_lt_u32 s{S_CNT}, {NFULL}")
    a(f"s_cbranch_scc1 {name}_lloop")
    for k in range(NFULL, 15):
        left = 15 - k
        a(f"s_waitcnt vmcnt({10*(left-1)})")
        a("s_barrier")
    a(f"{name}_end:")
    a("s_endpgm")
    return a.text(), kernel_desc(name, 200, 96 if STAMP else 64)

def main(out):
    launches = [("qkv_kernel", 256, 512, K1_NBUF * K1_STAGE)]
    parts = [gen_k1("qkv_kernel")]
    if "k2" in globals() or True:
        try:
            import gen23
            launches += gen23.launches()
            parts += gen23.parts()
        except ImportError:
            pass
    hdr = ""
    for (n, g, b, lds) in launches:
        hdr += f"; @launch kernel={n} grid=({g},1,1) block=({b},1,1) lds={lds}\n"
    s = hdr + '.amdgcn_target "amdgcn-amd-amdhsa--gfx950"\n.text\n'
    for t, d in parts: s += t
    s += '.section .rodata,"a"\n'
    for t, d in parts: s += d
    open(out, "w").write(s)

if __name__ == "__main__":
    import gen as _G
    _G.main(sys.argv[1] if len(sys.argv) > 1 else "k.s")
```

```python
import gen, os
from gen import *
import gen as _g

K2_SLOT = 32768
K2_NBUF = 4
T_BOUND2 = 48.0 * 48.0
V_HI = 2.0 ** 100
V_LO = 2.0 ** -100

def E(s, i): return f"v_exp_f32 v{s+i}, v{s+i}"
def C(p, s, i): return f"v_cvt_pk_bf16_f32 v{p+i}, v{s+2*i}, v{s+2*i+1}"

SC = os.environ.get("K2_SC", "sc1")
class R:
    K = [40, 48]
    V = [56, 64]
    S = [72, 88]
    P = [104, 112]
    O = [120, 136, 152, 168]
    L = [184, 188, 192, 196]
    ONES, IDX = 200, 204
    M = [206, 207, 208, 209]
    @staticmethod
    def Q(g, f): return 8 + g * 8 + f * 4
XSLOT = 4352

def attn_consts(a, t=30):
    a("v_and_b32 v2, 3, v0")
    a("v_cmp_gt_u32 vcc, 2, v2")
    a("v_bfe_u32 v3, v0, 2, 1")
    a(f"v_cmp_eq_u32 s[{t}:{t+1}], 0, v3")
    a("s_nop 1")
    a(f"s_and_b64 s[{t+2}:{t+3}], vcc, s[{t}:{t+1}]")
    a(f"s_andn2_b64 s[{t}:{t+1}], vcc, s[{t}:{t+1}]")
    a("v_mov_b32 v4, 0x3f803f80")
    a(f"v_cndmask_b32 v{R.ONES}, 0, v4, s[{t+2}:{t+3}]")
    a(f"v_cndmask_b32 v{R.ONES+1}, 0, v4, s[{t+2}:{t+3}]")
    a(f"v_cndmask_b32 v{R.ONES+2}, 0, v4, s[{t}:{t+1}]")
    a(f"v_cndmask_b32 v{R.ONES+3}, 0, v4, s[{t}:{t+1}]")
    a(f"v_mov_b32 v{R.IDX}, 0x4444")
    a("v_mov_b32 v4, 0xeeee")
    a("v_cmp_eq_u32 vcc, 1, v2")
    a("s_nop 1")
    a(f"v_cndmask_b32 v{R.IDX}, v{R.IDX}, v4, vcc")

def attn_zero(a):
    for r in list(range(R.P[0], R.P[0] + 16)) + list(range(R.O[0], R.O[0] + 80)) + list(range(R.V[0], R.V[0] + 16)):
        a(f"v_mov_b32 v{r}, 0")

class KVStream:
    def __init__(self, a, SWS, S_KVB, S_BLK, S_OFF, S_LEFT):
        self.a, self.SWS, self.KVB, self.BLK, self.OFF, self.LEFT = a, SWS, S_KVB, S_BLK, S_OFF, S_LEFT
        self.inloop = False
    def advance(self):
        a = self.a
        if os.environ.get("K2_SAMETILE"): a(f"s_mov_b32 s{self.OFF}, 0")
        else: a(f"s_lshl_b32 s{self.OFF}, s{self.BLK}, 14")
        a(f"s_add_u32 s{self.OFF}, s{self.OFF}, s{self.KVB}")
        a(f"s_add_u32 s{self.BLK}, s{self.BLK}, 1")
        a(f"s_and_b32 s{self.BLK}, s{self.BLK}, 15")
        a(f"s_sub_u32 s{self.LEFT}, s{self.LEFT}, 1")
        a(f"s_cselect_b32 s{self.OFF}, 0x80000000, s{self.OFF}")
        a(f"s_max_i32 s{self.LEFT}, s{self.LEFT}, 0")
    def ld(self, dst, o):
        if os.environ.get("K2_NOLD") and self.inloop: return
        self.a(f"buffer_load_dwordx4 {vr(dst,4)}, v1, {sr(self.SWS,4)}, s{self.OFF} offen offset:{o} {SC}")

def attn_prologue_loads(a, st):
    st.advance(); st.ld(R.K[0], 0); st.ld(R.K[0] + 4, 1024); st.ld(R.V[0], 2048); st.ld(R.V[0] + 4, 3072)
    st.advance(); st.ld(R.K[1], 0); st.ld(R.K[1] + 4, 1024); st.ld(R.V[1], 2048)

def attn_loop(a, lbl, slow, st, S_I, ntile):
    a("s_waitcnt vmcnt(5)")
    a(mf32(R.S[0], R.K[0], R.Q(0, 0), None))
    a(mf32(R.S[0], R.K[0] + 4, R.Q(0, 1), R.S[0]))
    a(f"s_mov_b32 s{S_I}, 0")
    a("s_nop 15")
    a(f"{lbl}_loop:")
    st.inloop = True
    for n in range(8):
        T = n // 4; g = n % 4; cur = n % 2; nxt = 1 - cur
        gn = (g + 1) % 4; gp = (g - 1) % 4
        Tn = T if g < 3 else 1 - T
        Tp = T if g > 0 else 1 - T
        s = R.S[cur]; sn = R.S[nxt]; p = R.P[cur]; pp = R.P[nxt]
        pr = os.environ.get("K2_PRIO", "none")
        if pr != "none": a(f"s_setprio {pr[n % len(pr)]}")
        sw = os.environ.get("K2_SWITCH")
        if sw and n % 4 == 0:
            a(f"s_add_u32 s43, s{S_I}, {n//4}")
            a(f"s_cmp_ge_u32 s43, {sw}")
            a(f"s_cbranch_scc0 {lbl}_sw{n}")
            a("s_setprio 0")
            a(f"{lbl}_sw{n}:")
        if os.environ.get("K2_BAR") and n == int(os.environ.get("K2_BAR")): a("s_barrier")
        if g == 3: a("s_waitcnt vmcnt(4)")
        a(mf32(sn, R.K[Tn], R.Q(gn, 0), None))
        if slow:
            for i in range(3): a(f"v_sub_f32 v{s+i}, v{s+i}, v{R.M[g]}")
        a(E(s, 0)); a(E(s, 1)); a(E(s, 2))
        a(mf32(sn, R.K[Tn] + 4, R.Q(gn, 1), sn))
        if g == 2:
            st.advance(); st.ld(R.K[T], 0); st.ld(R.K[T] + 4, 1024)
        if slow:
            for i in range(3, 16): a(f"v_sub_f32 v{s+i}, v{s+i}, v{R.M[g]}")
        a(E(s, 3)); a(E(s, 4)); a(E(s, 5))
        if g == 1: a("s_waitcnt vmcnt(4)")
        a(mf32(R.O[gp], R.V[Tp] + 4, pp + 4, R.O[gp]))
        if g == 0: st.ld(R.V[Tp] + 4, 3072)
        a(E(s, 6)); a(E(s, 7))
        a(f"v_smfmac_f32_16x16x64_bf16 {vr(R.L[gp],4)}, {vr(R.ONES,4)}, {vr(pp,8)}, v{R.IDX}")
        for i in range(4): a(C(p, s, i))
        a(E(s, 8)); a(E(s, 9))
        if g == 0: a("s_waitcnt vmcnt(5)")
        a(mf32(R.O[g], R.V[T], p, R.O[g]))
        if g == 3: st.ld(R.V[T], 2048)
        for i in range(10, 16): a(E(s, i))
        for i in range(4, 8): a(C(p, s, i))
    st.inloop = False
    a(f"s_add_u32 s{S_I}, s{S_I}, 2")
    a(f"s_cmp_lt_u32 s{S_I}, {ntile}")
    a(f"s_cbranch_scc1 {lbl}_loop")
    a("s_nop 1")
    a(mf32(R.O[3], R.V[1] + 4, R.P[1] + 4, R.O[3]))
    a(f"v_smfmac_f32_16x16x64_bf16 {vr(R.L[3],4)}, {vr(R.ONES,4)}, {vr(R.P[1],8)}, v{R.IDX}")

def attn_prepass(a, lbl, st, S_I, S_HH, S_KQ, T0, T1, XB):
    for g in range(4): a(f"v_mov_b32 v{R.M[g]}, 0xff800000")
    a(f"s_mov_b32 s{S_I}, 0")
    a(f"{lbl}_pre:")
    st.advance(); st.ld(R.K[0], 0); st.ld(R.K[0] + 4, 1024)
    a("s_waitcnt vmcnt(0)")
    for g in range(4):
        sb = R.S[g % 2]
        a(mf32(sb, R.K[0], R.Q(g, 0), None))
        a(mf32(sb, R.K[0] + 4, R.Q(g, 1), sb))
        a("s_nop 15")
        a("s_nop 3")
        for i in range(0, 16, 2):
            a(f"v_max3_f32 v{R.M[g]}, v{sb+i}, v{sb+i+1}, v{R.M[g]}")
    a(f"s_add_u32 s{S_I}, s{S_I}, 1")
    a(f"s_cmp_lt_u32 s{S_I}, 16")
    a(f"s_cbranch_scc1 {lbl}_pre")
    for g in range(4):
        a(f"v_mov_b32 v2, v{R.M[g]}")
        a("s_nop 1")
        a(f"v_permlane32_swap_b32 v{R.M[g]}, v2")
        a("s_nop 1")
        a(f"v_max_f32 v{R.M[g]}, v{R.M[g]}, v2")
    a(f"s_lshl_b32 s{T0}, s{S_HH}, 2")
    a(f"s_add_u32 s{T1}, s{T0}, s{S_KQ}")
    a(f"s_lshl_b32 s{T1}, s{T1}, 10")
    a(f"s_add_u32 s{T1}, s{T1}, {XB}")
    a(f"s_lshl_b32 s{T0}, s{T0}, 10")
    a(f"s_add_u32 s{T0}, s{T0}, {XB}")
    a("v_lshrrev_b32 v3, 2, v1")
    a(f"v_add_u32 v2, s{T1}, v3")
    a(f"v_add_u32 v3, s{T0}, v3")
    for g in range(4): a(f"ds_write_b32 v2, v{R.M[g]} offset:{g*256}")
    a("s_waitcnt lgkmcnt(0)")
    a("s_barrier")
    for k in range(4):
        for g in range(4):
            a(f"ds_read_b32 v{R.S[0]+k*4+g}, v3 offset:{k*1024+g*256}")
    a("s_waitcnt lgkmcnt(0)")
    for g in range(4):
        a(f"v_max3_f32 v{R.M[g]}, v{R.S[0]+g}, v{R.S[0]+4+g}, v{R.S[0]+8+g}")
        a(f"v_max_f32 v{R.M[g]}, v{R.M[g]}, v{R.S[0]+12+g}")
    a("s_barrier")

def attn_combine(a, lbl, S_HH, S_KQ, T0, T1, XB):
    a("s_nop 15")
    for g in range(4):
        a(f"v_add_f32 v{R.L[g]}, v{R.L[g]}, v{R.L[g]+1}")
    a(f"s_mul_i32 s{T0}, s{S_HH}, {12*XSLOT}")
    a(f"s_add_u32 s{T0}, s{T0}, {XB}")
    a(f"v_add_u32 v2, s{T0}, v1")
    a("v_lshrrev_b32 v3, 2, v1")
    a(f"v_add_u32 v3, s{T0}, v3")
    for kq in range(4):
        a(f"s_cmp_lg_u32 s{S_KQ}, {kq}")
        a(f"s_cbranch_scc1 {lbl}_c{kq}")
        for g in range(4):
            if g == kq: continue
            o = (g * 3 + ((kq - g - 1) & 3)) * XSLOT
            for i in range(4):
                a(f"ds_write_b128 v2, {vr(R.O[g]+4*i,4)} offset:{o+i*1024}")
            a(f"ds_write_b32 v3, v{R.L[g]} offset:{o+4096}")
        a("s_waitcnt lgkmcnt(0)")
        a("s_barrier")
        tmp = [R.S[0], R.S[1], R.K[0]]
        for j in range(3):
            o = (kq * 3 + j) * XSLOT
            for i in range(4):
                a(f"ds_read_b128 {vr(tmp[j]+4*i,4)}, v2 offset:{o+i*1024}")
            a(f"ds_read_b32 v{R.P[0]+j}, v3 offset:{o+4096}")
        a("s_waitcnt lgkmcnt(0)")
        a(f"v_add_f32 v{R.P[0]}, v{R.P[0]}, v{R.P[0]+1}")
        a(f"v_add_f32 v{R.P[0]+2}, v{R.P[0]+2}, v{R.L[kq]}")
        a(f"v_add_f32 v{R.P[0]}, v{R.P[0]}, v{R.P[0]+2}")
        a(f"v_rcp_f32 v{R.P[1]}, v{R.P[0]}")
        for i in range(16):
            a(f"v_add_f32 v{tmp[0]+i}, v{tmp[0]+i}, v{tmp[1]+i}")
            a(f"v_add_f32 v{tmp[2]+i}, v{tmp[2]+i}, v{R.O[kq]+i}")
        for i in range(16):
            a(f"v_add_f32 v{tmp[0]+i}, v{tmp[0]+i}, v{tmp[2]+i}")
        for i in range(16):
            a(f"v_mul_f32 v{tmp[0]+i}, v{tmp[0]+i}, v{R.P[1]}")
        a(f"s_branch {lbl}_cdone")
        a(f"{lbl}_c{kq}:")
    a(f"{lbl}_cdone:")
    for i in range(8):
        a(C(R.P[0], R.S[0], i))

def attn_store_o(a, SWS, S_RB, S_KQ, S_H, T0, T1, sc=""):
    a(f"s_lshl_b32 s{T0}, s{S_RB}, 2")
    a(f"s_add_u32 s{T0}, s{T0}, s{S_KQ}")
    a(f"s_lshl_b32 s{T0}, s{T0}, 6")
    a(f"s_add_u32 s{T0}, s{T0}, s{S_H}")
    a(f"s_lshl_b32 s{T0}, s{T0}, 10")
    a(f"s_add_u32 s{T0}, s{T0}, {WS_O}")
    a("v_bfe_u32 v2, v0, 4, 1")
    a("v_lshlrev_b32 v2, 15, v2")
    a("v_lshrrev_b32 v3, 5, v0")
    a("v_lshl_add_u32 v2, v3, 8, v2")
    a("v_and_b32 v3, 15, v0")
    a("v_lshl_add_u32 v2, v3, 4, v2")
    for f in range(2):
        a(f"buffer_store_dwordx4 {vr(R.P[0]+4*f,4)}, v2, {sr(SWS,4)}, s{T0} offen offset:{f*512} {sc}")

def gen_k2(name):
    gen.STAMP_BASE[0] = 1 << 20
    a = A(); kernel_header(a, name)
    S_RB, S_HP, S_WAVE, S_KQ, S_HH, S_H = 16, 17, 18, 19, 12, 14
    SWS = 20
    S_T0, S_T1, S_I, S_OFF, S_BLK, S_KVB, S_LEFT = 36, 37, 35, 38, 40, 41, 39
    a("s_cmp_ge_u32 s2, 256")
    a(f"s_cbranch_scc1 {name}_end")
    a("s_load_dwordx2 s[8:9], s[0:1], 40")
    decode_wg(a, S_RB, S_HP, S_T0, S_T1)
    a("v_lshrrev_b32 v1, 6, v0")
    a("v_and_b32 v0, 63, v0")
    a("s_nop 0")
    a(f"v_readfirstlane_b32 s{S_WAVE}, v1")
    a("v_lshlrev_b32 v1, 4, v0")
    a("s_nop 2")
    a(f"s_lshr_b32 s{S_HH}, s{S_WAVE}, 2")
    a(f"s_and_b32 s{S_KQ}, s{S_WAVE}, 3")
    a(f"s_lshl_b32 s{S_H}, s{S_HP}, 1")
    a(f"s_add_u32 s{S_H}, s{S_H}, s{S_HH}")
    a("s_waitcnt lgkmcnt(0)")
    srd(a, SWS, 8, 9, WS_END)
    stamp(a, 0)
    a(f"s_lshl_b32 s{S_T0}, s{S_H}, 6")
    a(f"s_lshl_b32 s{S_T1}, s{S_RB}, 2")
    a(f"s_add_u32 s{S_T0}, s{S_T0}, s{S_T1}")
    a(f"s_lshl_b32 s{S_T0}, s{S_T0}, 11")
    if WS_Q: a(f"s_add_u32 s{S_T0}, s{S_T0}, {WS_Q}")
    a(f"s_add_u32 s{S_T1}, s{S_T0}, 4096")
    for g in range(4):
        for f in range(2):
            a(f"buffer_load_dwordx4 {vr(R.Q(g,f),4)}, v1, {sr(SWS,4)}, s{S_T0 if g<2 else S_T1} offen offset:{(g%2)*2048+f*1024}")
    NR = 72
    a(f"s_lshl_b32 s{S_T0}, s{S_HP}, 10")
    a(f"s_add_u32 s{S_T0}, s{S_T0}, {WS_NRM}")
    a(f"buffer_load_dwordx4 {vr(NR,4)}, v1, {sr(SWS,4)}, s{S_T0} offen")
    attn_zero(a)
    a(f"s_lshl_b32 s{S_KVB}, s{S_H}, 6")
    a(f"s_add_u32 s{S_KVB}, s{S_KVB}, s{S_KQ}")
    a(f"s_lshl_b32 s{S_KVB}, s{S_KVB}, 12")
    a(f"s_add_u32 s{S_KVB}, s{S_KVB}, {WS_KV}")
    a(f"s_mov_b32 s{S_BLK}, s{S_RB}")
    a(f"s_mov_b32 s{S_LEFT}, 16")
    st = KVStream(a, SWS, S_KVB, S_BLK, S_OFF, S_LEFT)
    attn_consts(a)
    a("s_waitcnt vmcnt(0)")
    a("v_bfe_u32 v2, v0, 1, 4")
    a(f"v_cmp_eq_u32 vcc, s{S_RB}, v2")
    a("s_nop 1")
    a(f"v_cndmask_b32 v{NR}, 0, v{NR}, vcc")
    for ctl in ("row_shr:1", "row_shr:2", "row_shr:4", "row_shr:8"):
        a("s_nop 1")
        for s in range(3):
            a(f"v_max_f32_dpp v{NR+s}, v{NR+s}, v{NR+s} {ctl} row_mask:0xf bank_mask:0xf bound_ctrl:0")
    a("s_nop 1")
    for s in range(3):
        a(f"v_max_f32_dpp v{NR+s}, v{NR+s}, v{NR+s} row_bcast:15 row_mask:0xa bank_mask:0xf")
    a("s_nop 1")
    a(f"v_mul_f32 v{NR}, v{NR}, v{NR+1}")
    a(f"v_mov_b32 v2, {f2u(T_BOUND2)}")
    a(f"v_cmp_le_f32 vcc, v{NR}, v2")
    a(f"v_mov_b32 v2, {f2u(V_HI)}")
    a(f"v_cmp_le_f32 s[30:31], v{NR+2}, v2")
    a(f"v_mov_b32 v2, {f2u(V_LO)}")
    a(f"v_cmp_ge_f32 s[32:33], v{NR+2}, v2")
    a("s_nop 1")
    a("s_and_b64 s[30:31], s[30:31], vcc")
    a("s_and_b64 s[30:31], s[30:31], s[32:33]")
    a("s_bitcmp1_b32 s30, 31")
    a("s_cselect_b32 s42, 1, 0")
    a("s_bitcmp1_b32 s31, 31")
    a("s_cselect_b32 s43, 1, 0")
    a("s_and_b32 s42, s42, s43")
    stamp(a, 1)
    a("s_cmp_eq_u32 s42, 0")
    a(f"s_cbranch_scc1 {name}_slow")
    if os.environ.get("K2_SWITCH"):
        a(f"s_cmp_eq_u32 s{S_HH}, 1")
        a(f"s_cbranch_scc0 {name}_np")
        a("s_setprio 1")
        a(f"{name}_np:")
    attn_prologue_loads(a, st)
    attn_loop(a, name + "_fast", False, st, S_I, 16)
    a(f"{name}_fin:")
    stamp(a, 2)
    attn_combine(a, name, S_HH, S_KQ, S_T0, S_T1, 0)
    attn_store_o(a, SWS, S_RB, S_KQ, S_H, S_T0, S_T1)
    if gen.STAMP:
        a("s_waitcnt vmcnt(0)")
        stamp(a, 3)
        a(f"s_lshl_b32 s91, s2, 3")
        a(f"s_add_u32 s91, s91, s{S_WAVE}")
        stamp_flush(a, 4, 8, 9, 91)
    a("s_endpgm")
    a(f"{name}_slow:")
    attn_prepass(a, name, st, S_I, S_HH, S_KQ, S_T0, S_T1, 0)
    a(f"s_mov_b32 s{S_BLK}, s{S_RB}")
    a(f"s_mov_b32 s{S_LEFT}, 16")
    attn_prologue_loads(a, st)
    attn_loop(a, name + "_slow", True, st, S_I, 16)
    a(f"s_branch {name}_fin")
    a(f"{name}_end:")
    a("s_endpgm")
    return a.text(), kernel_desc(name, 216, 96 if gen.STAMP else 64)

def gen_k3(name):
    gen.STAMP_BASE[0] = 2 << 20
    a = A(); kernel_header(a, name)
    S_RB, S_CB, S_WAVE, S_RG, S_KH = 16, 17, 18, 19, 12
    SWO, SWS, SOUT = 20, 24, 28
    S_T0, S_T1, S_I, S_OB = 36, 37, 35, 38
    a("s_cmp_ge_u32 s2, 256")
    a(f"s_cbranch_scc1 {name}_end")
    a("s_load_dwordx4 s[4:7], s[0:1], 16")
    a("s_load_dwordx2 s[8:9], s[0:1], 40")
    a(f"s_and_b32 s{S_T0}, s2, 7")
    a(f"s_lshr_b32 s{S_T1}, s2, 3")
    a(f"s_lshr_b32 s{S_RB}, s{S_T0}, 1")
    a(f"s_lshl_b32 s{S_RB}, s{S_RB}, 2")
    a(f"s_and_b32 s{S_CB}, s{S_T1}, 3")
    a(f"s_add_u32 s{S_RB}, s{S_RB}, s{S_CB}")
    a(f"s_and_b32 s{S_CB}, s{S_T0}, 1")
    a(f"s_lshl_b32 s{S_CB}, s{S_CB}, 3")
    a(f"s_lshr_b32 s{S_T1}, s{S_T1}, 2")
    a(f"s_add_u32 s{S_CB}, s{S_CB}, s{S_T1}")
    a("v_mov_b32 v6, v0")
    a("v_lshrrev_b32 v1, 6, v0")
    a("v_and_b32 v0, 63, v0")
    a("s_nop 0")
    a(f"v_readfirstlane_b32 s{S_WAVE}, v1")
    a("v_lshlrev_b32 v1, 4, v0")
    a("s_nop 2")
    a(f"s_and_b32 s{S_RG}, s{S_WAVE}, 3")
    a(f"s_lshr_b32 s{S_KH}, s{S_WAVE}, 2")
    a("s_waitcnt lgkmcnt(0)")
    stamp(a, 0)
    a(f"s_lshl_b32 s{S_T0}, s{S_CB}, 7")
    a(f"s_add_u32 s4, s4, s{S_T0}")
    a("s_addc_u32 s5, s5, 0")
    srd(a, SWO, 4, 5, 0)
    a(f"s_sub_u32 s{SWO+2}, {1024*2048}, s{S_T0}")
    srd(a, SWS, 8, 9, WS_END)
    srd(a, SOUT, 6, 7, 2048 * 2048)
    a("v_lshrrev_b32 v2, 3, v0")
    a("v_and_b32 v3, 7, v0")
    a("v_bfe_u32 v4, v2, 1, 2")
    a("v_lshlrev_b32 v4, 1, v4")
    a("v_xor_b32 v4, v4, v3")
    a("v_lshlrev_b32 v4, 4, v4")
    a("v_lshl_add_u32 v4, v2, 11, v4")
    a(f"s_lshl_b32 s{S_T0}, s{S_WAVE}, 18")
    a(f"s_lshl_b32 s{S_T1}, s{S_WAVE}, 14")
    for i in range(16):
        a(f"s_add_u32 m0, s{S_T1}, {i*1024}")
        a(f"s_add_u32 s{S_I}, s{S_T0}, {i*8*2048}")
        a(f"buffer_load_dwordx4 v4, {sr(SWO,4)}, s{S_I} offen lds")
    a(f"s_lshl_b32 s{S_T0}, s{S_RB}, 3")
    a(f"s_lshl_b32 s{S_T1}, s{S_RG}, 1")
    a(f"s_add_u32 s{S_T0}, s{S_T0}, s{S_T1}")
    a(f"s_lshl_b32 s{S_T0}, s{S_T0}, 5")
    a(f"s_lshl_b32 s{S_T1}, s{S_KH}, 4")
    a(f"s_add_u32 s{S_T0}, s{S_T0}, s{S_T1}")
    a(f"s_lshl_b32 s{S_OB}, s{S_T0}, 10")
    a(f"s_add_u32 s{S_OB}, s{S_OB}, {WS_O}")
    a(f"s_add_u32 s39, s{S_OB}, {32*1024}")
    BF = 64
    def bf(h, b): return BF + (h * 2 + b) * 4
    for h in range(16):
        for b in range(2):
            so = S_OB if b == 0 else 39
            if h % 4 == 0 and h > 0 and b == 0:
                a(f"s_add_u32 s{S_OB}, s{S_OB}, 4096")
                a(f"s_add_u32 s39, s39, 4096")
            a(f"buffer_load_dwordx4 {vr(bf(h,b),4)}, v1, {sr(SWS,4)}, s{so} offen offset:{(h%4)*1024}")
    ACC = 8
    def acc(b, t): return ACC + (b * 4 + t) * 4
    for r in range(ACC, ACC + 32): a(f"v_mov_b32 v{r}, 0")
    AF = [40, 56]
    AF = [192, 208]
    a("v_lshrrev_b32 v2, 4, v0")
    a("v_bfe_u32 v3, v0, 2, 2")
    a("v_and_b32 v4, 1, v2")
    a("v_lshl_add_u32 v4, v4, 2, v3")
    a("v_lshrrev_b32 v5, 1, v2")
    a("v_lshl_add_u32 v5, v5, 4, v4")
    a("v_lshlrev_b32 v5, 7, v5")
    a("v_lshrrev_b32 v4, 1, v4")
    a("v_and_b32 v3, 3, v0")
    a("v_lshl_add_u32 v5, v3, 3, v5")
    a(f"s_lshl_b32 s{S_T0}, s{S_KH}, 16")
    a(f"v_add_u32 v5, s{S_T0}, v5")
    VA = 224
    for t in range(4):
        a(f"v_xor_b32 v7, {t}, v4")
        a(f"v_lshl_add_u32 v{VA+t}, v7, 5, v5")
    a("s_waitcnt vmcnt(32)")
    a("s_barrier")
    stamp(a, 1)
    def areads(c, h):
        o = []
        for t4 in range(4):
            for t in range(2):
                o.append(f"ds_read_b64_tr_b16 {vr(AF[c]+t4*4+2*t,2)}, v{VA+t4} offset:{h*4096+t*1024}")
        return o
    for x in areads(0, 0): a(x)
    for h in range(16):
        c = h % 2
        a(f"s_waitcnt vmcnt({30-2*h}) lgkmcnt(0)")
        rd = areads(1 - c, h + 1) if h < 15 else []
        k = 0
        for b in range(2):
            for t4 in range(4):
                a(mf16(acc(b, t4), AF[c] + 4 * t4, bf(h, b), acc(b, t4)))
                if k < len(rd): a(rd[k])
                k += 1
    stamp(a, 2)
    a("s_nop 7")
    a("s_barrier")
    ROWB = 272
    a("v_and_b32 v2, 15, v0")
    a(f"s_lshl_b32 s{S_T0}, s{S_RG}, 5")
    a(f"v_add_u32 v2, s{S_T0}, v2")
    a(f"v_mul_u32_u24 v2, {ROWB}, v2")
    a("v_lshrrev_b32 v3, 4, v0")
    a("v_lshl_add_u32 v2, v3, 4, v2")
    a(f"s_mul_i32 s{S_T0}, s{S_KH}, {128*ROWB}")
    a(f"v_add_u32 v2, s{S_T0}, v2")
    for b in range(2):
        for t4 in range(4):
            a(f"ds_write_b128 v2, {vr(acc(b,t4),4)} offset:{b*16*ROWB + t4*64}")
    a("s_waitcnt lgkmcnt(0)")
    a("s_barrier")
    a("v_lshrrev_b32 v2, 3, v6")
    a("v_and_b32 v3, 7, v6")
    a(f"v_mul_u32_u24 v4, {ROWB}, v2")
    a("v_lshl_add_u32 v4, v3, 5, v4")
    for i in range(2):
        for kh in range(2):
            for q in range(2):
                a(f"ds_read_b128 {vr(8+(i*4+kh*2+q)*4,4)}, v4 offset:{i*64*ROWB + kh*128*ROWB + q*16}")
    a(f"s_lshl_b32 s{S_T0}, s{S_RB}, 18")
    a(f"s_lshl_b32 s{S_T1}, s{S_CB}, 7")
    a(f"s_add_u32 s{S_T0}, s{S_T0}, s{S_T1}")
    a("v_lshlrev_b32 v5, 11, v2")
    a("v_lshl_add_u32 v5, v3, 4, v5")
    a(f"s_add_u32 s{S_T1}, s{S_T0}, {64*2048}")
    a("s_waitcnt lgkmcnt(0)")
    for i in range(2):
        b0 = 8 + i * 16
        for e in range(8):
            a(f"v_add_f32 v{b0+e}, v{b0+e}, v{b0+8+e}")
        for e in range(4):
            a(f"v_cvt_pk_bf16_f32 v{48+i*4+e}, v{b0+2*e}, v{b0+2*e+1}")
        a(f"buffer_store_dwordx4 {vr(48+i*4,4)}, v5, {sr(SOUT,4)}, s{S_T0 if i==0 else S_T1} offen")
    if gen.STAMP:
        a("s_waitcnt vmcnt(0)")
        stamp(a, 3)
        a(f"s_lshl_b32 s91, s2, 3")
        a(f"s_add_u32 s91, s91, s{S_WAVE}")
        stamp_flush(a, 4, 8, 9, 91)
    a(f"{name}_end:")
    a("s_endpgm")
    return a.text(), kernel_desc(name, 232, 96 if gen.STAMP else 64)

def launches():
    return [("attn_kernel", 256, 512, 8*3*4352), ("oproj_kernel", 256, 512, 131072)]
def parts():
    return [gen_k2("attn_kernel"), gen_k3("oproj_kernel")]
```

```python
import os, sys
import gen
from gen import *
import gen23
from gen23 import R, E, C, XSLOT, KVStream, attn_consts, attn_zero, attn_prepass, attn_combine, T_BOUND2, V_HI, V_LO

NAME = "standalone__softmax_full_mha__prompt_kernel"
WS_FKV = 17 << 20
WS_FO  = (17 << 20) + (128 << 10)
WS_TOTAL = 18 << 20
POLL_MAX = 200000
XQ, XKV, XN = 0, 16384, 49152
XC = 163840 - 24 * XSLOT
WO_EARLY = 7

S_RB, S_HP, S_WAVE, S_HH, S_KQ, S_H = 16, 17, 18, 12, 19, 14
SX, SW, SWS = 20, 24, 28
S_KX, S_KW, S_BUF, S_CNT, S_T0, S_T1, S_DELTA = 32, 33, 34, 35, 36, 37, 38
S_NONCE, S_QN = 48, 49
S_RB3, S_CB = 50, 51
S_WOK, S_WOL = 52, 53
S_I, S_OFF, S_BLK, S_KVB, S_LEFT = 35, 38, 40, 41, 39

def poll(a, lbl, vaddr, sbase, nlanes_mask, vdst, n, check):
    pass

def gen_fused():
    gen.STAMP_BASE[0] = 0
    name = NAME
    a = A(); kernel_header(a, name)
    a("s_cmp_ge_u32 s2, 256")
    a(f"s_cbranch_scc1 {name}_end")
    a("s_load_dwordx4 s[4:7], s[0:1], 0")
    a("s_load_dwordx4 s[44:47], s[0:1], 16")
    a("s_load_dwordx4 s[8:11], s[0:1], 32")
    decode_wg(a, S_RB, S_HP, S_T0, S_T1)
    a(f"s_and_b32 s{S_RB3}, s2, 7")
    a(f"s_lshl_b32 s{S_RB3}, s{S_RB3}, 1")
    a(f"s_bfe_u32 s{S_T0}, s2, 0x10003")
    a(f"s_add_u32 s{S_RB3}, s{S_RB3}, s{S_T0}")
    a(f"s_lshr_b32 s{S_CB}, s2, 4")
    a("v_lshrrev_b32 v1, 6, v0")
    a("v_and_b32 v0, 63, v0")
    a("s_nop 0")
    a(f"v_readfirstlane_b32 s{S_WAVE}, v1")
    a("s_waitcnt lgkmcnt(0)")
    a(f"s_lshl_b32 s{S_T0}, s{S_RB}, 18")
    a(f"s_add_u32 s4, s4, s{S_T0}")
    a("s_addc_u32 s5, s5, 0")
    srd(a, SX, 4, 5, 128 * 2048)
    a(f"s_lshl_b32 s{S_T0}, s{S_HP}, 7")
    a(f"s_add_u32 s6, s6, s{S_T0}")
    a("s_addc_u32 s7, s7, 0")
    srd(a, SW, 6, 7, 0)
    a(f"s_sub_u32 s{SW+2}, {1024*6144}, s{S_T0}")
    srd(a, SWS, 10, 11, WS_TOTAL)
    stamp(a, 0)
    a(f"s_cmp_ge_u32 s{S_WAVE}, 4")
    a(f"s_cbranch_scc1 {name}_loader")

    S_PH, S_RP = 40, 41
    a("s_cmp_lg_u32 s2, 0")
    a(f"s_cbranch_scc1 {name}_nononce")
    a(f"s_cmp_lg_u32 s{S_WAVE}, 0")
    a(f"s_cbranch_scc1 {name}_nononce")
    a("s_memrealtime s[54:55]")
    a("s_waitcnt lgkmcnt(0)")
    a("s_or_b32 s54, s54, 1")
    a("v_mov_b32 v2, 0")
    a("v_mov_b32 v3, s54")
    a("s_mov_b64 exec, 1")
    a("global_store_dword v2, v3, s[8:9] sc1")
    a("s_mov_b64 exec, -1")
    a(f"{name}_nononce:")
    ACC = 16
    def acc(s, b4, aa): return ACC + ((s * 4 + b4) * 2 + aa) * 4
    FB = [112, 152]
    def xf(c, b4): return FB[c] + 4 * b4
    def wf(c, s, aa): return FB[c] + 16 + (s * 2 + aa) * 4
    VXA, VWA, VNONCE, VZERO = 192, 194, 196, 197
    a(f"s_lshr_b32 s{S_PH}, s{S_WAVE}, 1")
    a(f"s_and_b32 s{S_RP}, s{S_WAVE}, 1")
    a("v_and_b32 v2, 15, v0")
    a("v_lshrrev_b32 v3, 4, v0")
    a(f"s_lshl_b32 s{S_T0}, s{S_RP}, 6")
    a(f"v_add_u32 v5, s{S_T0}, v2")
    a("v_lshrrev_b32 v4, 1, v2")
    a("v_xor_b32 v4, v4, v3")
    a("v_lshlrev_b32 v4, 4, v4")
    a(f"v_lshl_add_u32 v{VXA}, v5, 7, v4")
    a(f"v_xor_b32 v{VXA+1}, 64, v{VXA}")
    a("v_bfe_u32 v4, v0, 2, 2")
    a("v_lshl_add_u32 v5, v3, 3, v4")
    a("v_lshlrev_b32 v5, 7, v5")
    a("v_lshrrev_b32 v6, 1, v4")
    a(f"v_xor_b32 v6, s{S_PH}, v6")
    a("v_lshl_add_u32 v5, v6, 6, v5")
    a("v_and_b32 v6, 1, v3")
    a("v_lshl_add_u32 v5, v6, 5, v5")
    a("v_and_b32 v6, 3, v0")
    a("v_lshl_add_u32 v5, v6, 3, v5")
    a(f"v_add_u32 v{VWA}, 16384, v5")
    a(f"v_xor_b32 v{VWA+1}, 32, v{VWA}")
    a(f"v_mov_b32 v{VZERO}, 0")
    a(f"v_mov_b32 v{VNONCE}, 0")
    for r in range(ACC, ACC + 96):
        a(f"v_mov_b32 v{r}, 0")
    def reads(c, ks):
        o = []
        for b4 in range(4):
            o.append(f"ds_read_b128 {vr(xf(c,b4),4)}, v{VXA+ks} offset:{b4*2048}")
        for s in range(3):
            for aa in range(2):
                for t in range(2):
                    o.append(f"ds_read_b64_tr_b16 {vr(wf(c,s,aa)+2*t,2)}, v{VWA+aa} offset:{s*8192+ks*4096+t*512}")
        return o
    def mfmas(c):
        o = []
        for b4 in range(4):
            for s in range(2):
                for aa in range(2):
                    o.append(mf16(acc(s,b4,aa), wf(c,s,aa), xf(c,b4), acc(s,b4,aa)))
            for aa in range(2):
                o.append(mf16(acc(2,b4,aa), xf(c,b4), wf(c,2,aa), acc(2,b4,aa)))
        return o
    def inter(m, rd):
        k = 0
        for i, x in enumerate(m):
            a(x)
            if k < len(rd):
                a(rd[k]); k += 1
        assert k == len(rd)
    a(f"s_mov_b32 s{S_CNT}, 0")
    a(f"s_mov_b32 s39, {K1_STAGE}")
    a("s_barrier")
    stamp(a, 1)
    for x in reads(0, 0): a(x)
    a(f"{name}_cloop:")
    a("s_waitcnt lgkmcnt(0)")
    inter(mfmas(0), reads(1, 1))
    a("s_waitcnt lgkmcnt(0)")
    a(f"s_add_u32 s{S_CNT}, s{S_CNT}, 1")
    a(f"s_cmp_eq_u32 s{S_CNT}, 16")
    a(f"s_cbranch_scc1 {name}_clast")
    a("s_barrier")
    a(f"s_cmp_lg_u32 s{S_CNT}, 12")
    a(f"s_cbranch_scc1 {name}_nofetch")
    a(f"global_load_dword v{VNONCE}, v{VZERO}, s[8:9] sc1")
    a(f"{name}_nofetch:")
    a(f"s_and_b32 s{S_T0}, s{S_CNT}, {K1_NBUF-1}")
    a(f"s_cmp_eq_u32 s{S_T0}, 0")
    a(f"s_cselect_b32 s{S_DELTA}, {-(K1_NBUF-1)*K1_STAGE & 0xffffffff}, s39")
    m = mfmas(1)
    a(m[0])
    for ks in range(2): a(f"v_add_u32 v{VXA+ks}, s{S_DELTA}, v{VXA+ks}")
    for aa in range(2): a(f"v_add_u32 v{VWA+aa}, s{S_DELTA}, v{VWA+aa}")
    inter(m[1:], reads(0, 0))
    a(f"s_branch {name}_cloop")
    a(f"{name}_clast:")
    for x in mfmas(1): a(x)
    stamp(a, 2)
    a(f"s_mov_b32 s{S_T1}, 0")
    a(f"{name}_nwait:")
    a("s_waitcnt vmcnt(0)")
    a(f"v_readfirstlane_b32 s{S_NONCE}, v{VNONCE}")
    a(f"s_add_u32 s{S_T1}, s{S_T1}, 1")
    a(f"s_cmp_lg_u32 s{S_NONCE}, 0")
    a(f"s_cbranch_scc1 {name}_ngot")
    a(f"s_cmp_gt_u32 s{S_T1}, {POLL_MAX}")
    a(f"s_cbranch_scc1 {name}_ngot")
    a(f"global_load_dword v{VNONCE}, v{VZERO}, s[8:9] sc1")
    a("s_sleep 1")
    a(f"s_branch {name}_nwait")
    a(f"{name}_ngot:")
    S_PHEAD, S_TILE, S_C, S_OKV = 42, 43, 54, 55
    a(f"s_lshl_b32 s{S_PHEAD}, s{S_HP}, 1")
    a(f"s_add_u32 s{S_PHEAD}, s{S_PHEAD}, s{S_PH}")
    a(f"s_lshl_b32 s{S_TILE}, s{S_RB}, 2")
    a(f"s_lshl_b32 s{S_T0}, s{S_RP}, 1")
    a(f"s_add_u32 s{S_TILE}, s{S_TILE}, s{S_T0}")
    a(f"s_mov_b32 s{S_C}, {f2u(CSCALE)}")
    a("v_lshlrev_b32 v1, 4, v0")
    FR = 112
    def fr(g, s): return FR + (g * 3 + s) * 8
    a(f"s_lshl_b32 s{S_T0}, s{S_PHEAD}, 6")
    a(f"s_add_u32 s{S_T0}, s{S_T0}, s{S_TILE}")
    a(f"s_lshl_b32 s{S_OKV}, s{S_T0}, 12")
    a(f"s_add_u32 s{S_OKV}, s{S_OKV}, {WS_KV}")
    a(f"s_lshl_b32 s{S_T0}, s{S_WAVE}, 13")
    a(f"s_add_u32 s{S_T0}, s{S_T0}, {XKV}")
    a(f"v_add_u32 v2, s{S_T0}, v1")
    a(f"s_lshl_b32 s{S_T0}, s{S_WAVE}, 12")
    if XQ: a(f"s_add_u32 s{S_T0}, s{S_T0}, {XQ}")
    a(f"v_add_u32 v3, s{S_T0}, v1")
    def pack_qk(g, s):
        for aa in range(2):
            for b in range(2):
                src = acc(s, 2 * g + b, aa)
                for i in range(2):
                    a(f"v_cvt_pk_bf16_f32 v{fr(g,s)+aa*4+b*2+i}, v{src+2*i}, v{src+2*i+1}")
        a("s_nop 0")
        for aa in range(2):
            for i in range(2):
                a(f"v_permlane16_swap_b32 v{fr(g,s)+aa*4+i}, v{fr(g,s)+aa*4+2+i}")
    def pack_v(g):
        for b in range(2):
            for aa in range(2):
                src = acc(2, 2 * g + b, aa)
                for i in range(2):
                    a(f"v_cvt_pk_bf16_f32 v{fr(g,2)+b*4+aa*2+i}, v{src+2*i}, v{src+2*i+1}")
        a("s_nop 0")
        for b in range(2):
            for i in range(2):
                a(f"v_permlane16_swap_b32 v{fr(g,2)+b*4+i}, v{fr(g,2)+b*4+2+i}")
        a("s_nop 0")
        for b in range(2):
            for i in range(2):
                a(f"v_permlane32_swap_b32 v{fr(g,2)+b*4+i}, v{fr(g,2)+b*4+2+i}")
    for g in range(2):
        pack_qk(g, 1); pack_v(g)
        a("s_nop 0")
        for s in (1, 2):
            for f in range(2):
                a(f"buffer_store_dwordx4 {vr(fr(g,s)+4*f,4)}, v1, {sr(SWS,4)}, s{S_OKV} offen offset:{(s-1)*2048+f*1024} sc1")
        for s in (1, 2):
            for f in range(2):
                a(f"ds_write_b128 v2, {vr(fr(g,s)+4*f,4)} offset:{g*4096+(s-1)*2048+f*1024}")
        if g == 0: a(f"s_add_u32 s{S_OKV}, s{S_OKV}, 4096")
    for g in range(2):
        for b in range(2):
            for aa in range(2):
                for i in range(4):
                    r = acc(0, 2 * g + b, aa) + i
                    a(f"v_mul_f32 v{r}, s{S_C}, v{r}")
        pack_qk(g, 0)
        a("s_nop 0")
        for f in range(2):
            a(f"ds_write_b128 v3, {vr(fr(g,0)+4*f,4)} offset:{g*2048+f*1024}")
    NR = 16
    for g in range(2):
        for s in range(3):
            a(f"v_mov_b32 v{NR+g*3+s}, 0")
    a("s_nop 0")
    for i in range(8):
        for g in range(2):
            for s in range(3):
                r = NR + g * 3 + s
                a(f"v_dot2_f32_bf16 v{r}, v{fr(g,s)+i}, v{fr(g,s)+i}, v{r}")
    a("s_nop 3")
    for g in range(2):
        for s in range(2):
            a(f"v_mov_b32 v{NR+8+g*2+s}, v{NR+g*3+s}")
    a("s_nop 1")
    for g in range(2):
        for s in range(2):
            a(f"v_permlane32_swap_b32 v{NR+g*3+s}, v{NR+8+g*2+s}")
    a("s_nop 1")
    for g in range(2):
        for s in range(2):
            r = NR + g * 3 + s
            a(f"v_add_f32 v{r}, v{r}, v{NR+8+g*2+s}")
    for s in range(3):
        a(f"v_max_f32 v{NR+s}, v{NR+s}, v{NR+3+s}")
    for ctl in ("row_shr:1", "row_shr:2", "row_shr:4", "row_shr:8"):
        a("s_nop 1")
        for s in range(3):
            a(f"v_max_f32_dpp v{NR+s}, v{NR+s}, v{NR+s} {ctl} row_mask:0xf bank_mask:0xf bound_ctrl:0")
    a("s_nop 1")
    for s in range(3):
        a(f"v_max_f32_dpp v{NR+s}, v{NR+s}, v{NR+s} row_bcast:15 row_mask:0xa bank_mask:0xf")
    a("s_nop 1")
    for s in range(3):
        a(f"v_max_f32_dpp v{NR+s}, v{NR+s}, v{NR+s} row_bcast:31 row_mask:0xc bank_mask:0xf")
    a(f"v_mov_b32 v19, s{S_NONCE}")
    a(f"v_mov_b32 v20, s{S_NONCE}")
    a("v_mov_b32 v21, v17")
    a("v_mov_b32 v22, v18")
    a("v_mov_b32 v23, 0")
    a(f"s_lshl_b32 s{S_T0}, s{S_WAVE}, 4")
    a(f"s_add_u32 s{S_T0}, s{S_T0}, {XN}")
    a(f"v_mov_b32 v4, s{S_T0}")
    a("v_cmp_eq_u32 vcc, 63, v0")
    a("s_and_saveexec_b64 s[56:57], vcc")
    a(f"ds_write_b128 v4, v[16:19]")
    a("s_mov_b64 exec, s[56:57]")
    for i in range(4): a(f"v_mov_b32 v{212+i}, v{20+i}")
    a("s_waitcnt lgkmcnt(0)")
    a(f"s_branch {name}_join")

    a(f"{name}_loader:")
    S_J = 40
    a(f"s_sub_u32 s{S_J}, s{S_WAVE}, 4")
    VX, VW = k1_loader_setup(a, S_J, S_HP, S_T0, S_T1)
    S_LX, S_LW, S_ST = 41, 42, 43
    a(f"s_lshl_b32 s{S_LX}, s{S_J}, 12")
    a(f"s_lshl_b32 s{S_LW}, s{S_J}, 11")
    a(f"s_add_u32 s{S_LW}, s{S_LW}, 16384")
    a(f"s_and_b32 s{S_ST}, s{S_RB}, 7")
    a(f"s_lshl_b32 s{S_ST}, s{S_ST}, 1")
    a(f"s_and_b32 s{S_T0}, s{S_HP}, 3")
    a(f"s_lshl_b32 s{S_T0}, s{S_T0}, 2")
    a(f"s_add_u32 s{S_ST}, s{S_ST}, s{S_T0}")
    a(f"s_and_b32 s{S_ST}, s{S_ST}, 15")
    a(f"s_mov_b32 s{S_BUF}, 0")
    def issue_stage():
        a(f"s_lshl_b32 s{S_KX}, s{S_ST}, 7")
        a(f"s_mul_i32 s{S_KW}, s{S_ST}, {64*6144}")
        a(f"s_add_u32 s{S_T0}, s{S_BUF}, s{S_LX}")
        a(f"s_add_u32 s{S_T1}, s{S_BUF}, s{S_LW}")
        for i in range(4):
            a(f"s_add_u32 m0, s{S_T0}, {i*1024}")
            a("s_nop 0")
            a(f"buffer_load_dwordx4 v{VX+i}, {sr(SX,4)}, s{S_KX} offen lds")
        for s in range(3):
            for gi in range(2):
                a(f"s_add_u32 m0, s{S_T1}, {s*8192+gi*1024}")
                a("s_nop 0")
                a(f"buffer_load_dwordx4 v{VW+s*2+gi}, {sr(SW,4)}, s{S_KW} offen lds")
        a(f"s_add_u32 s{S_ST}, s{S_ST}, 1")
        a(f"s_and_b32 s{S_ST}, s{S_ST}, 15")
        a(f"s_add_u32 s{S_BUF}, s{S_BUF}, {K1_STAGE}")
        a(f"s_cmp_eq_u32 s{S_BUF}, {K1_NBUF*K1_STAGE}")
        a(f"s_cselect_b32 s{S_BUF}, 0, s{S_BUF}")
    for s in range(K1_NBUF - 1): issue_stage()
    a(f"s_waitcnt vmcnt({10*(K1_NBUF-2)})")
    a("s_barrier")
    a(f"s_mov_b32 s{S_CNT}, 0")
    NFULL = 16 - (K1_NBUF - 1)
    a(f"{name}_lloop:")
    issue_stage()
    a(f"s_waitcnt vmcnt({10*(K1_NBUF-2)})")
    a("s_barrier")
    a(f"s_add_u32 s{S_CNT}, s{S_CNT}, 1")
    a(f"s_cmp_lt_u32 s{S_CNT}, {NFULL}")
    a(f"s_cbranch_scc1 {name}_lloop")
    for k in range(NFULL, 15):
        left = 15 - k
        a(f"s_waitcnt vmcnt({10*(left-1)})")
        a("s_barrier")
    a("v_lshlrev_b32 v1, 4, v0")
    stamp(a, 1); stamp(a, 2)

    a(f"{name}_join:")
    a(f"s_lshr_b32 s{S_HH}, s{S_WAVE}, 2")
    a(f"s_and_b32 s{S_KQ}, s{S_WAVE}, 3")
    a(f"s_lshl_b32 s{S_H}, s{S_HP}, 1")
    a(f"s_add_u32 s{S_H}, s{S_H}, s{S_HH}")
    attn_consts(a, 56)
    attn_zero(a)
    a("s_barrier")
    stamp(a, 3)
    a(f"s_lshl_b32 s{S_T0}, s{S_HH}, 13")
    if XQ: a(f"s_add_u32 s{S_T0}, s{S_T0}, {XQ}")
    a(f"v_add_u32 v2, s{S_T0}, v1")
    for g in range(4):
        for f in range(2):
            a(f"ds_read_b128 {vr(R.Q(g,f),4)}, v2 offset:{g*2048+f*1024}")
    a(f"s_lshl_b32 s{S_T0}, s{S_WAVE}, 12")
    a(f"s_add_u32 s{S_T0}, s{S_T0}, {XKV}")
    a(f"v_add_u32 v2, s{S_T0}, v1")
    a(f"ds_read_b128 {vr(R.K[0],4)}, v2")
    a(f"ds_read_b128 {vr(R.K[0]+4,4)}, v2 offset:1024")
    a(f"ds_read_b128 {vr(R.V[0],4)}, v2 offset:2048")
    a(f"ds_read_b128 {vr(R.V[0]+4,4)}, v2 offset:3072")
    a("v_and_b32 v2, 3, v0")
    a("v_lshlrev_b32 v2, 4, v2")
    a(f"ds_read_b128 {vr(R.S[1],4)}, v2 offset:{XN}")
    a("s_waitcnt lgkmcnt(0)")
    NQ = R.S[1]
    a(f"v_max_f32_dpp v{NQ}, v{NQ}, v{NQ} quad_perm:[1,0,3,2] row_mask:0xf bank_mask:0xf")
    a("s_nop 1")
    a(f"v_max_f32_dpp v{NQ}, v{NQ}, v{NQ} quad_perm:[2,3,0,1] row_mask:0xf bank_mask:0xf")
    a("s_nop 1")
    a(f"v_readfirstlane_b32 s{S_QN}, v{NQ}")
    a(f"v_readfirstlane_b32 s{S_NONCE}, v{NQ+3}")
    def check(vk, vv, dst):
        a(f"v_mul_f32 v2, s{S_QN}, v{vk}")
        a(f"v_mov_b32 v3, {f2u(T_BOUND2)}")
        a(f"v_cmp_le_f32 vcc, v2, v3")
        a(f"v_mov_b32 v3, {f2u(V_HI)}")
        a(f"v_cmp_le_f32 s[56:57], v{vv}, v3")
        a(f"v_mov_b32 v3, {f2u(V_LO)}")
        a(f"v_cmp_ge_f32 s[58:59], v{vv}, v3")
        a("s_nop 1")
        a("s_and_b64 s[56:57], s[56:57], vcc")
        a("s_and_b64 s[56:57], s[56:57], s[58:59]")
        a("s_cmp_eq_u64 s[56:57], -1")
        a(f"s_cselect_b32 s{dst}, 1, 0")
    a("s_nop 1")
    check(NQ + 1, NQ + 2, 42)
    a("s_cmp_eq_u32 s42, 0")
    a(f"s_cbranch_scc1 {name}_skipA")
    a(mf32(R.S[0], R.K[0], R.Q(0, 0), None))
    a(mf32(R.S[0], R.K[0] + 4, R.Q(0, 1), R.S[0]))
    a("s_nop 15")
    def step(n, slow, st, last_tile=False, first=False, nonext=False, wdma=None):
        T = n // 4; g = n % 4; cur = n % 2; nxt = 1 - cur
        gn = (g + 1) % 4; gp = (g - 1) % 4
        Tn = T if g < 3 else 1 - T
        Tp = T if g > 0 else 1 - T
        s = R.S[cur]; sn = R.S[nxt]; p = R.P[cur]; pp = R.P[nxt]
        ld = st is not None
        w = 1 if wdma else 0
        if ld and g == 3 and not nonext: a(f"s_waitcnt vmcnt({4+w})")
        if not nonext: a(mf32(sn, R.K[Tn], R.Q(gn, 0), None))
        if slow:
            for i in range(3): a(f"v_sub_f32 v{s+i}, v{s+i}, v{R.M[g]}")
        a(E(s, 0)); a(E(s, 1)); a(E(s, 2))
        if not nonext: a(mf32(sn, R.K[Tn] + 4, R.Q(gn, 1), sn))
        if ld and g == 2:
            st.advance(); st.ld(R.K[T], 0); st.ld(R.K[T] + 4, 1024)
        if slow:
            for i in range(3, 16): a(f"v_sub_f32 v{s+i}, v{s+i}, v{R.M[g]}")
        a(E(s, 3)); a(E(s, 4)); a(E(s, 5))
        if ld and g == 1: a(f"s_waitcnt vmcnt({4+w})")
        if not first:
            a(mf32(R.O[gp], R.V[Tp] + 4, pp + 4, R.O[gp]))
        if ld and g == 0: st.ld(R.V[Tp] + 4, 3072)
        if ld and g == 1 and wdma: wdma()
        a(E(s, 6)); a(E(s, 7)); a(C(p, s, 0)); a(C(p, s, 1))
        if not first:
            a(f"v_smfmac_f32_16x16x64_bf16 {vr(R.L[gp],4)}, {vr(R.ONES,4)}, {vr(pp,8)}, v{R.IDX}")
        a(C(p, s, 2)); a(C(p, s, 3))
        a(E(s, 8)); a(E(s, 9))
        if ld and g == 0: a(f"s_waitcnt vmcnt({5+w})")
        a(mf32(R.O[g], R.V[T], p, R.O[g]))
        if ld and g == 3: st.ld(R.V[T], 2048)
        for i in range(10, 16): a(E(s, i))
        for i in range(4, 8): a(C(p, s, i))
    def drain(n):
        T = n // 4; g = n % 4; cur = n % 2
        a("s_nop 1")
        a(mf32(R.O[g], R.V[T] + 4, R.P[cur] + 4, R.O[g]))
        a(f"v_smfmac_f32_16x16x64_bf16 {vr(R.L[g],4)}, {vr(R.ONES,4)}, {vr(R.P[cur],8)}, v{R.IDX}")
    for n in range(4):
        step(n, False, None, first=(n == 0), nonext=(n == 3))
    drain(3)
    a(f"{name}_skipA:")
    stamp(a, 4)
    a(f"s_cmp_ge_u32 s{S_WAVE}, 4")
    a(f"s_cbranch_scc1 {name}_nopub")
    a(f"s_lshl_b32 s{S_T0}, s{S_HP}, 4")
    a(f"s_add_u32 s{S_T0}, s{S_T0}, s{S_RB}")
    a(f"s_lshl_b32 s{S_T0}, s{S_T0}, 2")
    a(f"s_add_u32 s{S_T0}, s{S_T0}, s{S_WAVE}")
    a(f"s_lshl_b32 s{S_T0}, s{S_T0}, 7")
    a(f"s_add_u32 s{S_T0}, s{S_T0}, {WS_FKV}")
    a("v_mov_b32 v2, 0")
    a("s_waitcnt vmcnt(0)")
    a("v_cmp_eq_u32 vcc, 63, v0")
    a("s_and_saveexec_b64 s[56:57], vcc")
    a(f"buffer_store_dwordx4 v[212:215], v2, {sr(SWS,4)}, s{S_T0} offen sc1")
    a("s_mov_b64 exec, s[56:57]")
    a(f"{name}_nopub:")
    a(f"s_lshl_b32 s{S_T0}, s{S_HP}, 13")
    a(f"s_add_u32 s{S_T0}, s{S_T0}, {WS_FKV}")
    a("v_lshlrev_b32 v4, 7, v0")
    a(f"s_mov_b32 s{S_T1}, 0")
    FL = R.S[1]
    a(f"{name}_kvpoll:")
    a(f"buffer_load_dwordx4 {vr(FL,4)}, v4, {sr(SWS,4)}, s{S_T0} offen sc1")
    a("s_waitcnt vmcnt(0)")
    a(f"v_cmp_eq_u32 vcc, s{S_NONCE}, v{FL}")
    a(f"s_add_u32 s{S_T1}, s{S_T1}, 1")
    a("s_cmp_eq_u64 vcc, -1")
    a(f"s_cbranch_scc1 {name}_kvgot")
    a(f"s_cmp_gt_u32 s{S_T1}, {POLL_MAX}")
    a(f"s_cbranch_scc1 {name}_kvgot")
    a("s_sleep 1")
    a(f"s_branch {name}_kvpoll")
    a(f"{name}_kvgot:")
    stamp(a, 5)
    check(FL + 1, FL + 2, 43)
    a(f"s_lshl_b32 s{S_KVB}, s{S_H}, 6")
    a(f"s_add_u32 s{S_KVB}, s{S_KVB}, s{S_KQ}")
    a(f"s_lshl_b32 s{S_KVB}, s{S_KVB}, 12")
    a(f"s_add_u32 s{S_KVB}, s{S_KVB}, {WS_KV}")
    st = KVStream(a, SWS, S_KVB, S_BLK, S_OFF, S_LEFT)
    SWO = 20
    a(f"s_lshl_b32 s{S_T0}, s{S_CB}, 7")
    a(f"s_add_u32 s44, s44, s{S_T0}")
    a("s_addc_u32 s45, s45, 0")
    srd(a, SWO, 44, 45, 0)
    a(f"s_sub_u32 s{SWO+2}, {1024*2048}, s{S_T0}")
    VWO = 210
    a("v_lshrrev_b32 v2, 3, v0")
    a("v_and_b32 v3, 7, v0")
    a("v_bfe_u32 v4, v2, 1, 2")
    a("v_lshlrev_b32 v4, 1, v4")
    a("v_xor_b32 v4, v4, v3")
    a("v_lshlrev_b32 v4, 4, v4")
    a(f"v_lshl_add_u32 v{VWO}, v2, 11, v4")
    def wo_reset(i0):
        a(f"s_lshl_b32 s{S_WOK}, s{S_WAVE}, 14")
        a(f"s_lshl_b32 s{S_WOL}, s{S_WAVE}, 10")
        if i0:
            a(f"s_add_u32 s{S_WOK}, s{S_WOK}, {i0*64*2048}")
            a(f"s_add_u32 s{S_WOL}, s{S_WOL}, {i0*64*128}")
    def wdma():
        a(f"s_mov_b32 m0, s{S_WOL}")
        a(f"s_add_u32 s{S_WOL}, s{S_WOL}, {64*128}")
        a(f"buffer_load_dwordx4 v{VWO}, {sr(SWO,4)}, s{S_WOK} offen lds")
        a(f"s_add_u32 s{S_WOK}, s{S_WOK}, {64*2048}")
    wo_reset(0)
    a("s_and_b32 s42, s42, s43")
    a("s_cmp_eq_u32 s43, 0")
    a(f"s_cbranch_scc1 {name}_slow")
    a("s_barrier")
    a(f"s_add_u32 s{S_BLK}, s{S_RB}, 1")
    a(f"s_and_b32 s{S_BLK}, s{S_BLK}, 15")
    a(f"s_mov_b32 s{S_LEFT}, 15")
    a(f"s_cmp_eq_u32 s{S_HH}, 1")
    a(f"s_cbranch_scc0 {name}_np")
    a("s_setprio 1")
    a(f"{name}_np:")
    def prologue_loads():
        st.advance(); st.ld(R.K[0], 0); st.ld(R.K[0] + 4, 1024); st.ld(R.V[0], 2048); st.ld(R.V[0] + 4, 3072)
        wdma()
        st.advance(); st.ld(R.K[1], 0); st.ld(R.K[1] + 4, 1024); st.ld(R.V[1], 2048)
    def mainloop(lbl, slow, ntile):
        for i in range(8): a(f"v_mov_b32 v{R.P[1]+i}, 0")
        for i in range(4): a(f"v_mov_b32 v{R.V[1]+4+i}, 0")
        prologue_loads()
        a("s_waitcnt vmcnt(6)")
        a(mf32(R.S[0], R.K[0], R.Q(0, 0), None))
        a(mf32(R.S[0], R.K[0] + 4, R.Q(0, 1), R.S[0]))
        a(f"s_mov_b32 s{S_I}, 0")
        a("s_nop 15")
        nloop = (ntile // 2) * 2
        a(f"{lbl}_loop:")
        for n in range(8):
            if n % 4 == 0 and not slow:
                a(f"s_add_u32 s43, s{S_I}, {n//4}")
                a(f"s_cmp_ge_u32 s43, {SWITCH}")
                a(f"s_cbranch_scc0 {lbl}_sw{n}")
                a("s_setprio 0")
                a(f"{lbl}_sw{n}:")
            step(n, slow, st, wdma=wdma)
        a(f"s_add_u32 s{S_I}, s{S_I}, 2")
        a(f"s_cmp_lt_u32 s{S_I}, {nloop}")
        a(f"s_cbranch_scc1 {lbl}_loop")
        if ntile % 2:
            for n in range(4):
                step(n, slow, st, nonext=(n == 3), wdma=wdma)
            drain(3)
        else:
            drain(7)
    mainloop(name + "_fast", False, 15)
    a(f"{name}_fin:")
    stamp(a, 6)
    a("s_setprio 0")
    a("s_waitcnt vmcnt(0)")
    a("s_barrier")
    attn_combine(a, name, S_HH, S_KQ, S_T0, S_T1, XC)
    gen23.attn_store_o(a, SWS, S_RB, S_KQ, S_H, S_T0, S_T1, "sc1")
    a("s_barrier")
    wo_reset(WO_EARLY)
    a("s_waitcnt vmcnt(0)")
    a(f"s_lshl_b32 s{S_T0}, s{S_RB}, 4")
    a(f"s_add_u32 s{S_T0}, s{S_T0}, s{S_HP}")
    a(f"s_lshl_b32 s{S_T0}, s{S_T0}, 3")
    a(f"s_add_u32 s{S_T0}, s{S_T0}, s{S_WAVE}")
    a(f"s_lshl_b32 s{S_T0}, s{S_T0}, 7")
    a(f"s_add_u32 s{S_T0}, s{S_T0}, {WS_FO}")
    a("v_mov_b32 v2, 0")
    a(f"v_mov_b32 v3, s{S_NONCE}")
    a("s_mov_b64 exec, 1")
    a(f"buffer_store_dword v3, v2, {sr(SWS,4)}, s{S_T0} offen sc1")
    a("s_mov_b64 exec, -1")
    for i in range(16 - WO_EARLY): wdma()
    stamp(a, 7)

    S_RG, S_KH, S_OB = 12, 19, 38
    a(f"s_and_b32 s{S_RG}, s{S_WAVE}, 3")
    a(f"s_lshr_b32 s{S_KH}, s{S_WAVE}, 2")
    a("v_and_b32 v2, 15, v0")
    a("v_lshrrev_b32 v3, 1, v2")
    a("v_lshlrev_b32 v3, 3, v3")
    a("v_and_b32 v2, 1, v2")
    a("v_lshl_add_u32 v3, v2, 2, v3")
    a("v_lshlrev_b32 v4, 7, v3")
    a(f"s_lshl_b32 s{S_T0}, s{S_RB3}, 4")
    a(f"s_lshl_b32 s{S_T1}, s{S_KH}, 3")
    a(f"s_add_u32 s{S_T0}, s{S_T0}, s{S_T1}")
    a(f"s_lshl_b32 s{S_T0}, s{S_T0}, 3")
    a(f"s_add_u32 s{S_T0}, s{S_T0}, s{S_RG}")
    a(f"s_lshl_b32 s{S_T0}, s{S_T0}, 7")
    a(f"s_add_u32 s{S_T0}, s{S_T0}, {WS_FO}")
    a(f"s_mov_b32 s{S_T1}, 0")
    a(f"{name}_opoll:")
    a(f"buffer_load_dword v5, v4, {sr(SWS,4)}, s{S_T0} offen sc1")
    a("s_waitcnt vmcnt(0)")
    a(f"v_cmp_eq_u32 vcc, s{S_NONCE}, v5")
    a(f"s_add_u32 s{S_T1}, s{S_T1}, 1")
    a("s_cmp_eq_u64 vcc, -1")
    a(f"s_cbranch_scc1 {name}_ogot")
    a(f"s_cmp_gt_u32 s{S_T1}, {POLL_MAX}")
    a(f"s_cbranch_scc1 {name}_ogot")
    a("s_sleep 1")
    a(f"s_branch {name}_opoll")
    a(f"{name}_ogot:")
    stamp(a, 8)
    a(f"s_lshl_b32 s{S_T0}, s{S_RB3}, 3")
    a(f"s_lshl_b32 s{S_T1}, s{S_RG}, 1")
    a(f"s_add_u32 s{S_T0}, s{S_T0}, s{S_T1}")
    a(f"s_lshl_b32 s{S_T0}, s{S_T0}, 5")
    a(f"s_lshl_b32 s{S_T1}, s{S_KH}, 4")
    a(f"s_add_u32 s{S_T0}, s{S_T0}, s{S_T1}")
    a(f"s_lshl_b32 s{S_OB}, s{S_T0}, 10")
    a(f"s_add_u32 s{S_OB}, s{S_OB}, {WS_O}")
    a(f"s_add_u32 s39, s{S_OB}, {32*1024}")
    BF = 64
    def bf(h, b): return BF + (h * 2 + b) * 4
    for h in range(16):
        for b in range(2):
            so = S_OB if b == 0 else 39
            if h % 4 == 0 and h > 0 and b == 0:
                a(f"s_add_u32 s{S_OB}, s{S_OB}, 4096")
                a(f"s_add_u32 s39, s39, 4096")
            a(f"buffer_load_dwordx4 {vr(bf(h,b),4)}, v1, {sr(SWS,4)}, s{so} offen offset:{(h%4)*1024} sc1")
    ACC3 = 8
    def acc3(b, t): return ACC3 + (b * 4 + t) * 4
    for r in range(ACC3, ACC3 + 32): a(f"v_mov_b32 v{r}, 0")
    AF = [192, 208]
    a("v_lshrrev_b32 v2, 4, v0")
    a("v_bfe_u32 v3, v0, 2, 2")
    a("v_and_b32 v4, 1, v2")
    a("v_lshl_add_u32 v4, v4, 2, v3")
    a("v_lshrrev_b32 v5, 1, v2")
    a("v_lshl_add_u32 v5, v5, 4, v4")
    a("v_lshlrev_b32 v5, 7, v5")
    a("v_lshrrev_b32 v4, 1, v4")
    a("v_and_b32 v3, 3, v0")
    a("v_lshl_add_u32 v5, v3, 3, v5")
    a(f"s_lshl_b32 s{S_T0}, s{S_KH}, 16")
    a(f"v_add_u32 v5, s{S_T0}, v5")
    VA = 224
    for t in range(4):
        a(f"v_xor_b32 v7, {t}, v4")
        a(f"v_lshl_add_u32 v{VA+t}, v7, 5, v5")
    a("s_barrier")
    def areads(c, h):
        o = []
        for t4 in range(4):
            for t in range(2):
                o.append(f"ds_read_b64_tr_b16 {vr(AF[c]+t4*4+2*t,2)}, v{VA+t4} offset:{h*4096+t*1024}")
        return o
    for x in areads(0, 0): a(x)
    for h in range(16):
        c = h % 2
        a(f"s_waitcnt vmcnt({30-2*h}) lgkmcnt(0)")
        rd = areads(1 - c, h + 1) if h < 15 else []
        k = 0
        for b in range(2):
            for t4 in range(4):
                a(mf16(acc3(b, t4), AF[c] + 4 * t4, bf(h, b), acc3(b, t4)))
                if k < len(rd): a(rd[k])
                k += 1
    stamp(a, 9)
    a("s_nop 7")
    a("s_barrier")
    ROWB = 272
    a("v_and_b32 v2, 15, v0")
    a(f"s_lshl_b32 s{S_T0}, s{S_RG}, 5")
    a(f"v_add_u32 v2, s{S_T0}, v2")
    a(f"v_mul_u32_u24 v2, {ROWB}, v2")
    a("v_lshrrev_b32 v3, 4, v0")
    a("v_lshl_add_u32 v2, v3, 4, v2")
    a(f"s_mul_i32 s{S_T0}, s{S_KH}, {128*ROWB}")
    a(f"v_add_u32 v2, s{S_T0}, v2")
    for b in range(2):
        for t4 in range(4):
            a(f"ds_write_b128 v2, {vr(acc3(b,t4),4)} offset:{b*16*ROWB + t4*64}")
    a("s_waitcnt lgkmcnt(0)")
    a("s_barrier")
    a(f"s_lshl_b32 s{S_T0}, s{S_WAVE}, 3")
    a("v_lshrrev_b32 v2, 3, v0")
    a(f"v_add_u32 v2, s{S_T0}, v2")
    a("v_and_b32 v3, 7, v0")
    a(f"v_mul_u32_u24 v4, {ROWB}, v2")
    a("v_lshl_add_u32 v4, v3, 5, v4")
    for i in range(2):
        for kh in range(2):
            for q in range(2):
                a(f"ds_read_b128 {vr(8+(i*4+kh*2+q)*4,4)}, v4 offset:{i*64*ROWB + kh*128*ROWB + q*16}")
    SOUT = 24
    srd(a, SOUT, 46, 47, 2048 * 2048)
    a(f"s_lshl_b32 s{S_T0}, s{S_RB3}, 18")
    a(f"s_lshl_b32 s{S_T1}, s{S_CB}, 7")
    a(f"s_add_u32 s{S_T0}, s{S_T0}, s{S_T1}")
    a("v_lshlrev_b32 v5, 11, v2")
    a("v_lshl_add_u32 v5, v3, 4, v5")
    a(f"s_add_u32 s{S_T1}, s{S_T0}, {64*2048}")
    a("s_waitcnt lgkmcnt(0)")
    for i in range(2):
        b0 = 8 + i * 16
        for e in range(8):
            a(f"v_add_f32 v{b0+e}, v{b0+e}, v{b0+8+e}")
        for e in range(4):
            a(f"v_cvt_pk_bf16_f32 v{48+i*4+e}, v{b0+2*e}, v{b0+2*e+1}")
        a(f"buffer_store_dwordx4 {vr(48+i*4,4)}, v5, {sr(SOUT,4)}, s{S_T0 if i==0 else S_T1} offen")
    if gen.STAMP:
        a("s_waitcnt vmcnt(0)")
        stamp(a, 10)
        a(f"s_lshl_b32 s91, s2, 3")
        a(f"s_add_u32 s91, s91, s{S_WAVE}")
        stamp_flush(a, 11, 10, 11, 91)
    a("s_endpgm")

    a(f"{name}_slow:")
    a("s_barrier")
    attn_zero(a)
    a(f"s_mov_b32 s{S_BLK}, s{S_RB}")
    a(f"s_mov_b32 s{S_LEFT}, 16")
    attn_prepass(a, name, st, S_I, S_HH, S_KQ, S_T0, S_T1, XC)
    a(f"s_mov_b32 s{S_BLK}, s{S_RB}")
    a(f"s_mov_b32 s{S_LEFT}, 16")
    mainloop(name + "_slowm", True, 16)
    a(f"s_branch {name}_fin")
    a(f"{name}_end:")
    a("s_endpgm")
    return a.text(), kernel_desc(name, 232, 102 if gen.STAMP else 64)

SWITCH = int(os.environ.get("SWITCH", "12"))

def main(out):
    t, d = gen_fused()
    s = f"; @launch grid=(256,1,1) block=(512,1,1) lds=163840\n"
    s += '.amdgcn_target "amdgcn-amd-amdhsa--gfx950"\n.text\n' + t + '.section .rodata,"a"\n' + d
    open(out, "w").write(s)

if __name__ == "__main__":
    main(sys.argv[1] if len(sys.argv) > 1 else "f.s")
```
